```python
import torch

def _softmax(x, axis=-1):
    return torch.softmax(x, dim=axis)
def _gelu(x):
    return torch.nn.functional.gelu(x, approximate="tanh")
def _silu(x):
    return torch.nn.functional.silu(x)
def _sigmoid(x):
    return torch.sigmoid(x)
def _layernorm(x, axis=-1, eps=1e-5):
    m = x.mean(dim=axis, keepdim=True)
    v = x.var(dim=axis, keepdim=True, unbiased=False)
    return (x - m) / torch.sqrt(v + eps)
def _scatter_add(tgt, idx, src, axis=0):
    return tgt.clone().index_add_(axis, idx, src)
def _segment_sum(src, seg, n):
    out = torch.zeros((n,) + src.shape[1:], dtype=src.dtype)
    return out.index_add_(0, seg, src)
def _pad(x, pw):
    flat = tuple(v for pair in reversed(pw) for v in pair)
    return torch.nn.functional.pad(x, flat)

kernel_name = 'parallel_sum__sliding_block__dense_activation_gelu__prompt'

def setup_inputs():

    _w = (lambda a: (lambda t: t.to(torch.bfloat16) if t.is_floating_point() else t)(torch.as_tensor(a)))
    def _A_setup():
        B, S, D = 1, 2048, 576
        return {
            "x": _w((lambda *s: torch.randn(*s, dtype=torch.bfloat16) * 0.05)(B, S, D)),
            "wqkv": _w((lambda *s: torch.randn(*s, dtype=torch.bfloat16) * 0.05)(D, 3 * D)),
            "wo": _w((lambda *s: torch.randn(*s, dtype=torch.bfloat16) * 0.05)(D, D)),
        }
    _A_in = _A_setup()

    def _B_setup():
        B, S, D, F = 1, 2048, 576, 4608
        return {
            "x": _w((lambda *s: torch.randn(*s, dtype=torch.bfloat16) * 0.05)(B, S, D)),
            "w1": _w((lambda *s: torch.randn(*s, dtype=torch.bfloat16) * 0.8)(D, F) * (D ** -0.5)),
            "b1": _w((lambda *s: torch.randn(*s, dtype=torch.bfloat16) * 0.8)(F) * 0.01),
            "w2": _w((lambda *s: torch.randn(*s, dtype=torch.bfloat16) * 0.8)(F, D) * (F ** -0.5)),
            "b2": _w((lambda *s: torch.randn(*s, dtype=torch.bfloat16) * 0.8)(D) * 0.01),
        }
    _B_in = _B_setup()

    return {
        "A_x": _A_in["x"],
        "A_wqkv": _A_in["wqkv"],
        "A_wo": _A_in["wo"],
        "B_x": _B_in["x"],
        "B_w1": _B_in["w1"],
        "B_b1": _B_in["b1"],
        "B_w2": _B_in["w2"],
        "B_b2": _B_in["b2"],
    }

def reference(A_x, A_wqkv, A_wo, B_x, B_w1, B_b1, B_w2, B_b2):
    def _A_ref(x, wqkv, wo):
        B, S, D = x.shape
        H = 32; Dh = D // H; W = 256
        qkv = (lambda x, *d: x.permute(*d))((x @ wqkv).reshape(B, S, 3, H, Dh), 2, 0, 3, 1, 4)
        q, k, v = qkv[0], qkv[1], qkv[2]
        scores = torch.einsum("bhqd,bhkd->bhqk", q, k) * (Dh ** -0.5)
        idx = torch.arange(S)
        mask = (idx[:, None] - idx[None, :] >= 0) & (idx[:, None] - idx[None, :] < W)
        scores = torch.where(mask[None, None], scores, -1e9)
        p = _softmax(scores, axis=-1)
        o = torch.einsum("bhqk,bhkd->bhqd", p, v)
        return (lambda x, *d: x.permute(*d))(o, 0, 2, 1, 3).reshape(B, S, D) @ wo

    def _B_ref(x, w1, b1, w2, b2):
        h = torch.einsum("bsd,df->bsf", x, w1) + b1
        h = _gelu(h)
        return torch.einsum("bsf,fd->bsd", h, w2) + b2

    x = A_x
    xn = _layernorm(x, axis=-1)
    return x + _A_ref(xn, A_wqkv, A_wo) + _B_ref(xn, B_w1, B_b1, B_w2, B_b2)
```

```python
import struct
import sys

NAME = "parallel_sum__sliding_block__dense_activation_gelu__prompt"


def f32(x):
    return "0x%08x" % struct.unpack("<I", struct.pack("<f", x))[0]


class Asm:
    def __init__(self):
        self.L = []
        self.lq = []

    def __call__(self, txt):
        for ln in txt.strip("\n").split("\n"):
            ln = ln.strip()
            if ln:
                self.L.append(ln)

    def lds(self, txt, tag):
        self(txt)
        self.lq.append(tag)

    def wait_lds(self, tag):
        idx = max(i for i, t in enumerate(self.lq) if t == tag) if tag in self.lq else None
        if idx is None:
            return
        n = len(self.lq) - 1 - idx
        self(f"s_waitcnt lgkmcnt({min(n, 15)})")
        self.lq = self.lq[idx + 1:]

    def wait_lds_all(self):
        self("s_waitcnt lgkmcnt(0)")
        self.lq = []


SLOT = 16384
NSLOT = 5
RING = SLOT * NSLOT
HOFF = RING
HG = 36864
BOFF = HOFF + 2 * HG
LDS_BYTES = BOFF + 2304
XB = HOFF
OF = HOFF + 9216

REC = 4608
R_Q0, R_K0, R_V, R_X = 0, 1024, 2048, 4096
WS_QKV = 0
WS_PART = 16 << 20
WS_BYTES = 268435456

P_X, P_WQKV, P_WO, P_W1, P_B1, P_W2, P_B2 = 4, 6, 8, 12, 14, 16, 18
P_OUT, P_DBG, P_WS = 20, 22, 24
SX, SQKV, SWO, SW1, SB1, SW2, SWS, SDBG, SD = 28, 32, 36, 40, 44, 48, 52, 56, 60
sW, sQ, sG, sJ, sT = 64, 65, 66, 67, 68
sDOFF, sDD2, sDSTEP, sDSLOT, sRD, sR = 69, 70, 71, 74, 75, 76
sDMASK = 72
sT0, sT1, sT2, sT3, sT4, sT5 = 77, 78, 79, 80, 81, 82
sW1BASE, sW2BASE, sWOBASE, sPBASE, sACT = 83, 84, 85, 86, 87
sC = 88
sM0, sM1 = 90, 92

vLANE, vN, vHALF, vINB, vAL, vA0, vA1, vDV, vDV2, vL16 = 1, 2, 3, 4, 5, 6, 7, 8, 9, 10
vHADDR, vBADDR, vC2, vAL2, vXA = 11, 12, 13, 14, 15
VB = 16
VOB = 160
ACC = (180, 196)
ABUF = 212
ABUF2 = 228
AXB = 244
VT = 248


def srd(a, s, p, nbytes):
    a(f"""s_mov_b32 s{s}, s{p}
          s_and_b32 s{s+1}, s{p+1}, 0xffff
          s_mov_b32 s{s+2}, {nbytes}
          s_mov_b32 s{s+3}, 0x20000""")


def vr(b, n):
    return f"v[{b}:{b+n-1}]"


def sr(b, n):
    return f"s[{b}:{b+n-1}]"


def mfma(a, d, x, y, c=None):
    cs = vr(d, 16) if c is None else c
    a(f"v_mfma_f32_32x32x16_bf16 {vr(d,16)}, {vr(x,4)}, {vr(y,4)}, {cs}")


def slot_adv(a, s):
    a(f"""s_add_u32 s{s}, s{s}, {SLOT}
          s_cmp_ge_u32 s{s}, {RING}
          s_cselect_b32 s{sT0}, {RING}, 0
          s_sub_u32 s{s}, s{s}, s{sT0}""")


def dma_ffn(a, srd_s=SD):
    a(f"""s_mov_b64 exec, {sr(sDMASK,2)}
          s_mov_b32 m0, s{sDSLOT}
          s_add_u32 s{sT1}, s{sDOFF}, s{sDD2}
          buffer_load_dwordx4 v{vDV}, {sr(srd_s,4)}, s{sDOFF} offen lds
          s_add_u32 m0, s{sDSLOT}, 1024
          s_add_u32 s{sDOFF}, s{sDOFF}, s{sDSTEP}
          buffer_load_dwordx4 v{vDV}, {sr(srd_s,4)}, s{sT1} offen lds
          s_mov_b64 exec, -1""")
    slot_adv(a, sDSLOT)


QKV_MASK2 = 0
for _l in range(64):
    _t, _pc = _l // 16, _l % 4
    if (_t == 0 and _pc < 2) or _t in (1, 2) or (_t == 3 and _pc == 0):
        QKV_MASK2 |= 1 << _l


def dma_qkv(a):
    a(f"""s_mov_b32 m0, s{sDSLOT}
          s_nop 0
          buffer_load_dwordx4 v{vDV}, {sr(SQKV,4)}, s{sDOFF} offen lds
          s_add_u32 m0, s{sDSLOT}, 1024
          s_mov_b64 exec, {sr(sM0,2)}
          buffer_load_dwordx4 v{vDV2}, {sr(SQKV,4)}, s{sDOFF} offen lds
          s_mov_b64 exec, -1
          s_add_u32 s{sDOFF}, s{sDOFF}, {32*3456}""")
    slot_adv(a, sDSLOT)


def set_ffn_voff(a, pitch):
    a(f"""v_bfe_u32 v{VT}, v{vLANE}, 2, 2
          v_mul_u32_u24 v{VT}, {pitch}, v{VT}
          v_lshrrev_b32 v{VT+1}, 4, v{vLANE}
          v_lshl_add_u32 v{VT}, v{VT+1}, 6, v{VT}
          v_and_b32 v{VT+1}, 3, v{vLANE}
          v_lshl_add_u32 v{vDV}, v{VT+1}, 4, v{VT}""")


def stage_top(a, vnext):
    a("s_waitcnt vmcnt(4)\ns_barrier")


def next_addr(a, vnext, val=vAL):
    a(f"v_add_u32 v{vnext}, s{sRD}, v{val}")
    slot_adv(a, sRD)


def gelu_ops(acc):
    C1 = f32(-2.0 * 1.4426950408889634 * 0.7978845608028654)
    ops = []
    for p in range(0, 16, 4):
        xs = [acc + p + i for i in range(4)]
        ts = [VT + i for i in range(4)]
        ops += [f"v_mul_f32 v{t}, v{x}, v{x}" for x, t in zip(xs, ts)]
        ops += [f"v_fmaak_f32 v{t}, v{t}, v{vC2}, {C1}" for t in ts]
        ops += [f"v_mul_f32 v{t}, v{x}, v{t}" for x, t in zip(xs, ts)]
        ops += [f"v_exp_f32 v{t}, v{t}" for t in ts]
        ops += [f"v_add_f32 v{t}, 1.0, v{t}" for t in ts]
        ops += [f"v_rcp_f32 v{t}, v{t}" for t in ts]
        ops += [f"v_mul_f32 v{t}, v{x}, v{t}" for x, t in zip(xs, ts)]
        ops += [f"v_cvt_pk_bf16_f32 v{acc+p//2}, v{ts[0]}, v{ts[1]}",
                f"v_cvt_pk_bf16_f32 v{acc+p//2+1}, v{ts[2]}, v{ts[3]}"]
    return ops


def a_reads(a, buf, vaddr, off0, estride, tag):
    a.lds(f"ds_read_b64_tr_b16 {vr(buf,2)}, v{vaddr} offset:{off0}", tag)
    a.lds(f"ds_read_b64_tr_b16 {vr(buf+2,2)}, v{vaddr} offset:{off0+estride}", tag)


def bias_reads(a, acc):
    for c in range(4):
        a.lds(f"ds_read_b128 {vr(acc+4*c,4)}, v{vBADDR} offset:{32*c}", "bias")


def ffn1_switch(a, lbl):
    a(f"""s_cmp_eq_u32 s{sR}, 4
          s_cbranch_scc1 L_{lbl}_tow2
          s_lshl_b32 s{sT1}, s{sR}, 8
          s_add_u32 s{sDOFF}, s{sW1BASE}, s{sT1}
          s_add_u32 s{sDOFF}, s{sDOFF}, 256
          s_cmp_eq_u32 s{sR}, 3
          s_cselect_b32 s{sDMASK+1}, 0, -1
          s_branch L_{lbl}_sw_done
          L_{lbl}_tow2:
          s_mov_b64 {sr(SD,2)}, {sr(SW2,2)}
          s_mov_b32 s{SD+2}, s{SW2+2}
          s_mov_b32 s{sDOFF}, s{sW2BASE}
          s_mov_b32 s{sDD2}, {4*1152}
          s_mov_b32 s{sDSTEP}, {64*1152}
          s_mov_b32 s{sDMASK+1}, -1
          v_mov_b32 v{vDV}, v{vDV2}
          L_{lbl}_sw_done:""")


def ffn1_epi_tail(a, accY):
    a.lds(f"ds_write_b128 v{vHADDR}, {vr(accY,4)}", "hw")
    a.lds(f"ds_write_b128 v{vHADDR}, {vr(accY+4,4)} offset:1024", "hw")


def ffn1_body(a, X, lbl, lite=False):
    accX, accY = ACC[X], ACC[1 - X]
    va = (vA0, vA1) if X == 0 else (vA1, vA0)
    ops = gelu_ops(accY)
    per = 4
    for st in range(9):
        vcur, vnx = va[st % 2], va[(st + 1) % 2]
        stage_top(a, vnx)
        if st == 0 and X == 1:
            a(f"""s_cmp_eq_u32 s{sR}, 1
                  s_cselect_b32 s{sT1}, s{sW}, 1
                  s_cmp_lg_u32 s{sT1}, 0
                  s_cbranch_scc1 L_{lbl}_nopub
                  s_lshl_b32 s{sT1}, 1, s{sT}
                  s_lshl_b32 s{sT2}, s{sJ}, 2
                  v_mov_b32 v{VT+6}, s{sT1}
                  v_mov_b32 v{VT+7}, s{sT2}
                  s_mov_b64 exec, 1
                  buffer_atomic_or v{VT+6}, v{VT+7}, {sr(SDBG,4)}, 0 offen sc1
                  s_mov_b64 exec, -1
                  L_{lbl}_nopub:""")
        if st == 5:
            ffn1_switch(a, lbl)
        dma_ffn(a)
        if st == 8:
            a(f"""s_cmp_eq_u32 s{sR}, 3
                  s_cselect_b64 vcc, -1, 0
                  v_cndmask_b32 v{vAL}, v{vAL}, v{vAL2}, vcc""")
        next_addr(a, vnx)
        for ks in range(4):
            s = 4 * st + ks
            if not lite:
                s2 = s + 2
                vad = vcur if s2 // 4 == st else vnx
                a_reads(a, ABUF + 4 * (s2 % 4), vad, (s2 % 4) * 4096, 1024, f"a{s2%36}")
                if s == 0:
                    a.wait_lds("bias")
                a.wait_lds(f"a{s}")
                mfma(a, accX, ABUF + 4 * (s % 4), VB + 4 * s)
            if s >= 1 or lite:
                for _ in range(per):
                    if ops:
                        a(ops.pop(0))
            if s == 33:
                assert not ops
                ffn1_epi_tail(a, accY)
                a(f"""s_lshl_b32 s{sT1}, s{sR}, 2
                      s_add_u32 s{sT1}, s{sT1}, s{sQ}
                      s_lshr_b32 s{sT2}, s{sQ}, 1
                      s_add_u32 s{sT2}, s{sT2}, 16
                      s_cmp_eq_u32 s{sR}, 4
                      s_cselect_b32 s{sT3}, s{sT2}, s{sT1}
                      s_lshl_b32 s{sT3}, s{sT3}, 11
                      s_mul_i32 s{sT4}, s{sG}, {HG}
                      s_add_u32 s{sT3}, s{sT3}, s{sT4}
                      s_add_u32 s{sT3}, s{sT3}, {HOFF}
                      v_add_u32 v{vHADDR}, s{sT3}, v{vL16}
                      s_add_u32 s{sT1}, s{sT1}, 4
                      s_cmp_ge_u32 s{sR}, 3
                      s_cselect_b32 s{sT1}, s{sT2}, s{sT1}
                      s_lshl_b32 s{sT1}, s{sT1}, 7
                      s_add_u32 s{sT1}, s{sT1}, {BOFF}
                      v_lshl_add_u32 v{vBADDR}, v{vHALF}, 4, s{sT1}""")
                if not lite:
                    bias_reads(a, accY)
    a(f"s_add_u32 s{sR}, s{sR}, 1")


def ffn2_switch(a, lbl, which):
    if which == 0:
        a(f"""s_mov_b64 {sr(SD,2)}, {sr(SWO,2)}
              s_mov_b32 s{SD+2}, s{SWO+2}
              s_lshl_b32 s{sT1}, s{sR}, 8
              s_add_u32 s{sDOFF}, s{sWOBASE}, s{sT1}""")
    else:
        a(f"""s_mov_b64 {sr(SD,2)}, {sr(SW2,2)}
              s_mov_b32 s{SD+2}, s{SW2+2}
              s_lshl_b32 s{sT1}, s{sR}, 8
              s_add_u32 s{sDOFF}, s{sW2BASE}, s{sT1}
              s_add_u32 s{sDOFF}, s{sDOFF}, 256
              s_cmp_ge_u32 s{sR}, 3
              s_cselect_b32 s{sDMASK+1}, 0, -1
              s_cmp_eq_u32 s{sR}, 4
              s_cselect_b32 s{sDMASK}, 0, -1
              s_cselect_b32 s{sDOFF}, s{sW2BASE}, s{sDOFF}""")


def ffn2_epi_ops(accY):
    ops = [f"v_cvt_pk_bf16_f32 v{accY+i}, v{accY+2*i}, v{accY+2*i+1}" for i in range(8)]
    ops += [f"buffer_store_dwordx4 {vr(accY,4)}, v{vL16}, {sr(SWS,4)}, s{sT5} offen",
            f"buffer_store_dwordx4 {vr(accY+4,4)}, v{vL16}, {sr(SWS,4)}, s{sT5} offen offset:1024"]
    return ops


def ffn2_tile_addr(a):
    a(f"""s_lshl_b32 s{sT1}, s{sR}, 2
          s_add_u32 s{sT1}, s{sT1}, s{sQ}
          s_lshr_b32 s{sT2}, s{sQ}, 1
          s_add_u32 s{sT2}, s{sT2}, 16
          s_cmp_eq_u32 s{sR}, 4
          s_cselect_b32 s{sT1}, s{sT2}, s{sT1}
          s_lshl_b32 s{sT2}, s{sT1}, 9
          s_add_u32 s{sT2}, s{sT2}, {XB}
          v_add_u32 v{vXA}, s{sT2}, v{vINB}
          s_lshl_b32 s{sT1}, s{sT1}, 12
          s_add_u32 s{sT5}, s{sPBASE}, s{sT1}""")


def ffn2_body(a, X, lbl, lite=False):
    accX, accY = ACC[X], ACC[1 - X]
    va = (vA0, vA1)
    ops = ffn2_epi_ops(accY)
    for st in range(10):
        vcur, vnx = va[st % 2], va[(st + 1) % 2]
        stage_top(a, vnx)
        if st == 5:
            ffn2_switch(a, lbl, 0)
        if st == 6:
            ffn2_switch(a, lbl, 1)
        dma_ffn(a)
        if st == 9:
            a(f"""s_cmp_eq_u32 s{sR}, 3
                  s_cselect_b64 vcc, -1, 0
                  v_cndmask_b32 v{vAL}, v{vAL}, v{vAL2}, vcc""")
        next_addr(a, vnx)
        for ks in range(4):
            s = 4 * st + ks
            if not lite:
                s2 = s + 2
                vad = vcur if s2 // 4 == st else vnx
                a_reads(a, ABUF + 4 * (s2 % 4), vad, (s2 % 4) * 4096, 2048, f"a{s2%40}")
                if s == 37:
                    a_reads(a, AXB, vXA, 0, 256, "ax")
                a.wait_lds(f"a{s}")
                b = VB + 4 * s if s < 36 else VOB + 4 * (s - 36)
                mfma(a, accX, ABUF + 4 * (s % 4), b, "0" if s == 0 else None)
                if s == 39:
                    a.wait_lds("ax")
                    mfma(a, accX, AXB, VOB + 16)
            if s >= 2 or lite:
                for _ in range(3):
                    if ops:
                        a(ops.pop(0))
            if s == 8:
                assert not ops
                ffn2_tile_addr(a)
    a(f"s_add_u32 s{sR}, s{sR}, 1")


def qkv_body(a, swapped):
    acc0, acc1 = ACC
    va = (vA0, vA1)
    for st in range(18):
        vcur, vnx = va[st % 2], va[(st + 1) % 2]
        stage_top(a, vnx)
        if st == 14:
            a(f"""s_mov_b32 s{sDOFF}, s{sW1BASE}
                  s_mov_b32 s{sDD2}, {4*9216}
                  s_mov_b32 s{sDSTEP}, {64*9216}""")
            set_ffn_voff(a, 9216)
        if st < 14:
            dma_qkv(a)
        else:
            dma_ffn(a)
        next_addr(a, vnx)
        for ks in range(2):
            s = 2 * st + ks
            s2 = s + 2
            if s2 < 36:
                a_reads(a, ABUF + 4 * (s2 % 4), vnx, (s2 % 2) * 8192, 2048, f"a{s2}")
                a_reads(a, ABUF2 + 4 * (s2 % 4), vnx, (s2 % 2) * 8192 + 1024, 2048, f"a{s2}")
            a.wait_lds(f"a{s}")
            c = "0" if s == 0 else None
            mfma(a, acc0, ABUF + 4 * (s % 4), VB + 4 * s, c)
            if swapped:
                mfma(a, acc1, VB + 4 * s, ABUF2 + 4 * (s % 4), c)
            else:
                mfma(a, acc1, ABUF2 + 4 * (s % 4), VB + 4 * s, c)


def qk_store(a, acc, sTile):
    t0, t1, t2, t3, t4 = VT, VT + 1, VT + 2, VT + 3, VT + 4
    for c in range(4):
        a(f"""v_cvt_pk_bf16_f32 v{acc+4*c}, v{acc+4*c}, v{acc+4*c+1}
              v_cvt_pk_bf16_f32 v{acc+4*c+1}, v{acc+4*c+2}, v{acc+4*c+3}
              s_lshl_b32 s{sT1}, s{sTile}, 3
              s_add_u32 s{sT1}, s{sT1}, {2*c}
              v_add_u32 v{t0}, s{sT1}, v{vHALF}
              v_mul_u32_u24 v{t1}, 57, v{t0}
              v_lshrrev_b32 v{t1}, 9, v{t1}
              v_mul_u32_u24 v{t2}, 9, v{t1}
              v_sub_u32 v{t2}, v{t0}, v{t2}
              v_and_b32 v{t3}, 1, v{t1}
              v_lshrrev_b32 v{t1}, 1, v{t1}
              v_mul_u32_u24 v{t3}, {2*REC}, v{t3}""")
        a(f"""v_cmp_lt_u32 vcc, 4, v{t2}
              v_subrev_u32 v{t4}, 5, v{t2}
              v_lshlrev_b32 v{t0}, 4, v{vN}
              v_cndmask_b32 v{t4}, v{t2}, v{t4}, vcc
              v_cndmask_b32 v{VT+5}, 0, v{vXA}, vcc
              v_add_u32 v{t0}, v{t0}, v{VT+5}
              v_lshl_add_u32 v{t0}, v{t1}, 10, v{t0}
              v_lshrrev_b32 v{VT+5}, 1, v{t4}
              v_lshl_add_u32 v{t0}, v{VT+5}, 9, v{t0}
              v_and_b32 v{VT+5}, 1, v{t4}
              v_lshl_add_u32 v{t0}, v{VT+5}, 3, v{t0}
              v_lshlrev_b32 v{t4}, 3, v{vN}
              v_lshl_add_u32 v{t4}, v{t1}, 8, v{t4}
              v_add_u32 v{t4}, {R_X}, v{t4}
              v_cmp_eq_u32 vcc, 4, v{t2}
              s_nop 1
              v_cndmask_b32 v{t0}, v{t0}, v{t4}, vcc
              v_add_u32 v{t0}, v{t0}, v{t3}
              v_cmp_lt_u32 vcc, 1, v{t1}
              v_mov_b32 v{t4}, 0x7fffff00
              s_nop 0
              v_cndmask_b32 v{t0}, v{t0}, v{t4}, vcc
              buffer_store_dwordx2 {vr(acc+4*c,2)}, v{t0}, {sr(SWS,4)}, s{sT5} offen sc1""")


def v_store(a, acc):
    t0, t1, t2 = VT, VT + 1, VT + 2
    for i in range(8):
        a(f"v_cvt_pk_bf16_f32 v{acc+i}, v{acc+2*i}, v{acc+2*i+1}")
    a(f"""s_sub_u32 s{sT1}, s{sQ}, 1
          s_lshl_b32 s{sT1}, s{sT1}, 5
          v_add_u32 v{t0}, s{sT1}, v{vN}
          v_mul_u32_u24 v{t1}, 57, v{t0}
          v_lshrrev_b32 v{t1}, 10, v{t1}
          v_mul_u32_u24 v{t2}, 18, v{t1}
          v_sub_u32 v{t2}, v{t0}, v{t2}
          v_lshl_add_u32 v{t2}, v{vHALF}, 5, v{t2}
          v_lshlrev_b32 v{t2}, 4, v{t2}
          v_mul_u32_u24 v{t1}, {REC}, v{t1}
          v_add_u32 v{t2}, v{t2}, v{t1}
          v_cmp_lt_u32 vcc, 71, v{t0}
          v_mov_b32 v{t1}, 0x7fffff00
          s_nop 0
          v_cndmask_b32 v{t2}, v{t2}, v{t1}, vcc
          buffer_store_dwordx4 {vr(acc,4)}, v{t2}, {sr(SWS,4)}, s{sT5} offen offset:{R_V} sc1
          buffer_store_dwordx4 {vr(acc+4,4)}, v{t2}, {sr(SWS,4)}, s{sT5} offen offset:{R_V+1024} sc1""")


def attention(a):
    S = lambda u: 16 + 16 * u
    K0 = lambda u: 160 + 4 * u
    K1 = lambda u: 196 + u
    KF = (208, 212)
    Q0, Q1 = 216, 220
    V = lambda u: (224 + 8 * u) if u < 3 else (160 + 8 * (u - 3))
    OA = 208
    vX = VT
    vM = VT + 1
    ONES = "0x3f803f80"
    NEGB = 0xff7f
    a(f"""s_sub_u32 s{sT1}, s{sT}, 4
          s_max_i32 s{sT1}, s{sT1}, 0
          s_lshl_b32 s{sT2}, 1, s{sT}
          s_lshl_b32 s{sT1}, 1, s{sT1}
          s_sub_u32 s{sT2}, s{sT2}, s{sT1}
          s_lshl_b32 s{sT1}, s{sJ}, 2
          v_mov_b32 v{VT}, s{sT1}
          s_mov_b32 s{sT3}, 0
          L_poll:
          buffer_load_dword v{VT+1}, v{VT}, {sr(SDBG,4)}, 0 offen sc1
          s_waitcnt vmcnt(0)
          v_readfirstlane_b32 s{sT1}, v{VT+1}
          s_and_b32 s{sT1}, s{sT1}, s{sT2}
          s_cmp_eq_u32 s{sT1}, s{sT2}
          s_cbranch_scc1 L_poll_done
          s_sleep 4
          s_add_u32 s{sT3}, s{sT3}, 1
          s_cmp_lt_u32 s{sT3}, 0x40000
          s_cbranch_scc1 L_poll
          L_poll_done:""")
    a(f"""s_lshl_b32 s{sT4}, s{sT}, 1
          s_add_u32 s{sT4}, s{sT4}, s{sG}
          s_sub_u32 s{sT4}, s{sT4}, 8
          s_lshl_b32 s{sT3}, s{sJ}, 6
          s_add_u32 s{sT3}, s{sT3}, s{sT4}
          s_lshl_b32 s{sT3}, s{sT3}, 2
          s_add_u32 s{sT3}, s{sT3}, s{sQ}
          s_mul_i32 s{sT3}, s{sT3}, {REC}
          s_and_b32 s{sT1}, s{sQ}, 1
          s_mul_i32 s{sT2}, s{sT1}, {REC - 4}
          s_sub_u32 s{sT2}, {R_X + REC}, s{sT2}
          v_lshl_add_u32 v{vX}, v{vN}, 3, s{sT2}""")

    def rec(u, dst):
        a(f"""s_add_u32 s{dst}, s{sT3}, {u*4*REC + WS_QKV + REC}
              s_add_i32 s{sT0}, s{sT4}, {u}
              s_cmp_lt_i32 s{sT0}, 0
              s_cselect_b32 s{dst}, 0x80000000, s{dst}""")

    rec(8, sT1)
    a(f"""s_sub_u32 s{sT2}, s{sT1}, {REC}
          buffer_load_dwordx4 {vr(Q0,4)}, v{vL16}, {sr(SWS,4)}, s{sT1} offen offset:{R_Q0} sc1
          buffer_load_dword v{Q1}, v{vX}, {sr(SWS,4)}, s{sT2} offen sc1""")
    for u in range(9):
        rec(u, sT1)
        a(f"""s_sub_u32 s{sT2}, s{sT1}, {REC}
              buffer_load_dwordx4 {vr(K0(u),4)}, v{vL16}, {sr(SWS,4)}, s{sT1} offen offset:{R_K0} sc1
              buffer_load_dword v{K1(u)}, v{vX}, {sr(SWS,4)}, s{sT2} offen offset:256 sc1""")
    a(f"v_cmp_gt_u32 {sr(sM1,2)}, 18, v{vN}")

    def vload(u):
        for r in range(8):
            a(f"v_mov_b32 v{V(u)+r}, {ONES}")
        rec(u, sT1)
        a(f"""s_mov_b64 exec, {sr(sM1,2)}
              buffer_load_dwordx4 {vr(V(u),4)}, v{vL16}, {sr(SWS,4)}, s{sT1} offen offset:{R_V} sc1
              buffer_load_dwordx4 {vr(V(u)+4,4)}, v{vL16}, {sr(SWS,4)}, s{sT1} offen offset:{R_V+1024} sc1
              s_mov_b64 exec, -1""")

    for u in range(3):
        vload(u)
    for kf in KF:
        a(f"v_mov_b32 v{kf+2}, 0\nv_mov_b32 v{kf+3}, 0")
    a(f"""v_mov_b32 v{Q1+2}, 0
          v_mov_b32 v{Q1+3}, 0
          v_cmp_eq_u32 vcc, 0, v{vHALF}
          v_mov_b32 v{vM}, 0x3f80
          v_lshlrev_b32 v{VT+2}, 2, v{vHALF}
          v_cndmask_b32 v{Q1+1}, 0, v{vM}, vcc
          v_sub_u32 v{VT+2}, v{vN}, v{VT+2}
          v_mov_b32 v{VT+3}, {f32(-1e30)}""")
    for r in range(16):
        cr = 8 * (r // 4) + r % 4
        a(f"""v_cmp_le_i32 vcc, {cr}, v{VT+2}
              s_nop 1
              v_cndmask_b32 v{S(8)+r}, v{VT+3}, 0, vcc
              v_cndmask_b32 v{S(0)+r}, 0, v{VT+3}, vcc""".replace(
            f"v_cndmask_b32 v{S(8)+r}, v{VT+3}, 0, vcc", f"v_cndmask_b32_e64 v{S(8)+r}, v{VT+3}, 0, vcc"))
    a(f"""s_waitcnt vmcnt(24)
          v_cmp_eq_u32 vcc, 0, v{vHALF}
          s_nop 1
          v_cndmask_b32 v{Q1}, 0, v{Q1}, vcc""")
    for u in range(9):
        kf = KF[u % 2]
        a(f"""s_waitcnt vmcnt({6 + 2*(8-u)})
              s_add_i32 s{sT0}, s{sT4}, {u}
              s_cmp_lt_i32 s{sT0}, 0
              s_cselect_b32 s{sT0}, {NEGB}, 0
              v_mov_b32 v{kf}, v{K1(u)}
              v_mov_b32 v{kf+1}, s{sT0}""")
        mfma(a, S(u), K0(u), Q0, None if u in (0, 8) else "0")
        a("s_nop 0")
        mfma(a, S(u), kf, Q1)
    for u in range(3, 9):
        vload(u)
    a(f"v_max3_f32 v{vM}, v{S(0)}, v{S(0)+1}, v{S(0)+2}")
    a(f"v_max3_f32 v{VT+2}, v{S(0)+3}, v{S(0)+4}, v{S(0)+5}")
    regs = list(range(S(0) + 6, S(8) + 16))
    k = 0
    while regs:
        d = vM if k % 2 == 0 else VT + 2
        a(f"v_max3_f32 v{d}, v{d}, v{regs[0]}, v{regs[1]}")
        regs = regs[2:]
        k += 1
    a(f"""v_max_f32 v{vM}, v{vM}, v{VT+2}
          v_mov_b32 v{VT+2}, v{vM}
          s_nop 1
          v_permlane32_swap_b32 v{vM}, v{VT+2}
          v_max_f32 v{vM}, v{vM}, v{VT+2}
          v_mul_f32 v{vM}, s{sC}, v{vM}""")
    for u in range(9):
        for r in range(16):
            a(f"v_fma_f32 v{S(u)+r}, v{S(u)+r}, s{sC}, -v{vM}")
        for r in range(16):
            a(f"v_exp_f32 v{S(u)+r}, v{S(u)+r}")
        for r in range(8):
            a(f"v_cvt_pk_bf16_f32 v{S(u)+r}, v{S(u)+2*r}, v{S(u)+2*r+1}")
        a(f"s_waitcnt vmcnt({2*(8-u)})")
        mfma(a, OA, V(u), S(u), "0" if u == 0 else None)
        mfma(a, OA, V(u) + 4, S(u) + 4)
    a(f"""s_nop 15
          v_rcp_f32 v{vM}, v{OA+10}
          s_nop 0""")
    for r in range(10):
        a(f"v_mul_f32 v{OA+r}, v{OA+r}, v{vM}")
    for r in range(5):
        a(f"v_cvt_pk_bf16_f32 v{VT+r}, v{OA+2*r}, v{OA+2*r+1}")
    a(f"""v_cmp_eq_u32 vcc, 0, v{vHALF}
          s_nop 1
          v_cndmask_b32 v{VT+4}, 0, v{VT+4}, vcc""")


def main_kernel(a):
    a(f"""s_cmp_ge_u32 s2, 256
          s_cbranch_scc1 L_main_end
          s_load_dwordx16 {sr(4,16)}, s[0:1], 0
          s_load_dwordx4 {sr(20,4)}, s[0:1], 64
          s_load_dwordx2 {sr(24,2)}, s[0:1], 80
          v_and_b32 v{vLANE}, 63, v0
          v_lshrrev_b32 v{VT}, 6, v0
          v_and_b32 v{vN}, 31, v0
          v_readfirstlane_b32 s{sW}, v{VT}
          v_bfe_u32 v{vHALF}, v0, 5, 1
          v_lshlrev_b32 v{vL16}, 4, v{vLANE}
          s_and_b32 s{sJ}, s2, 7
          s_lshr_b32 s{sT}, s2, 3
          s_and_b32 s{sQ}, s{sW}, 3
          s_lshr_b32 s{sG}, s{sW}, 2
          v_bfe_u32 v{VT}, v{vLANE}, 2, 2
          v_lshlrev_b32 v{vINB}, 6, v{VT}
          v_bfe_u32 v{VT}, v{vLANE}, 4, 1
          v_lshl_add_u32 v{vINB}, v{VT}, 5, v{vINB}
          v_and_b32 v{VT}, 3, v{vLANE}
          v_lshl_add_u32 v{vINB}, v{VT}, 3, v{vINB}
          s_waitcnt lgkmcnt(0)""")
    srd(a, SX, P_X, 2048 * 576 * 2)
    srd(a, SQKV, P_WQKV, 576 * 1728 * 2)
    srd(a, SWO, P_WO, 576 * 576 * 2)
    srd(a, SW1, P_W1, 576 * 4608 * 2)
    srd(a, SB1, P_B1, 4608 * 2)
    srd(a, SW2, P_W2, 4608 * 576 * 2)
    srd(a, SWS, P_WS, WS_BYTES)
    srd(a, SDBG, P_DBG, 256)
    srd(a, SD, P_W1, 576 * 4608 * 2)
    XR = 16
    XF = 64
    a(f"""v_and_b32 v{VT}, 7, v{vLANE}
          v_mul_u32_u24 v{VT}, 1152, v{VT}
          v_lshrrev_b32 v{VT+1}, 3, v{vLANE}
          v_lshl_add_u32 v{VT}, v{VT+1}, 4, v{VT}
          s_lshl_b32 s{sT1}, s{sT}, 3
          s_add_u32 s{sT1}, s{sT1}, s{sW}
          s_mul_i32 s{sT1}, s{sT1}, {8*1152}""")
    for i in range(9):
        a(f"buffer_load_dwordx4 {vr(XR+4*i,4)}, v{VT}, {sr(SX,4)}, s{sT1} offen offset:{128*i}")
    a(f"""v_lshlrev_b32 v{VT+2}, 2, v0
          s_mul_i32 s{sT1}, s{sJ}, 1152
          buffer_load_dword v{VT+3}, v{VT+2}, {sr(SB1,4)}, s{sT1} offen""")
    a(f"""v_bfe_u32 v{VT}, v{vLANE}, 2, 2
          v_mul_u32_u24 v{VT}, 3456, v{VT}
          v_lshrrev_b32 v{VT+1}, 4, v{vLANE}
          v_and_b32 v{VT+4}, 3, v{vLANE}
          v_lshl_add_u32 v{VT+1}, v{VT+1}, 2, v{VT+4}
          v_lshl_add_u32 v{VT}, v{VT+1}, 4, v{VT}
          v_cmp_lt_u32 vcc, 8, v{VT+1}
          v_mov_b32 v{VT+4}, {1152-144}
          v_mov_b32 v{VT+5}, {2304-64}
          v_cndmask_b32 v{VT+4}, 0, v{VT+4}, vcc
          v_add_u32 v{vDV}, v{VT}, v{VT+4}
          v_cmp_lt_u32 vcc, 3, v{VT+1}
          v_mov_b32 v{VT+4}, {1152+112}
          s_nop 0
          v_cndmask_b32 v{VT+4}, v{VT+4}, v{VT+5}, vcc
          v_add_u32 v{vDV2}, v{VT}, v{VT+4}
          s_mov_b32 s{sM0}, {QKV_MASK2 & 0xffffffff}
          s_mov_b32 s{sM0+1}, {QKV_MASK2 >> 32}
          s_mov_b64 {sr(sDMASK,2)}, -1
          s_mul_i32 s{sDOFF}, s{sW}, {4*3456}
          s_mul_i32 s{sT1}, s{sJ}, 144
          s_add_u32 s{sDOFF}, s{sDOFF}, s{sT1}
          s_lshl_b32 s{sDSLOT}, s{sW}, 11
          s_mov_b32 s{sRD}, 0
          s_mul_i32 s{sW1BASE}, s{sW}, {8*9216}
          s_mul_i32 s{sT1}, s{sJ}, 1152
          s_add_u32 s{sW1BASE}, s{sW1BASE}, s{sT1}
          s_mul_i32 s{sW2BASE}, s{sW}, {8*1152}
          s_mul_i32 s{sT1}, s{sJ}, {576*1152}
          s_add_u32 s{sW2BASE}, s{sW2BASE}, s{sT1}
          s_lshr_b32 s{sT1}, s{sW}, 1
          s_lshl_b32 s{sT1}, s{sT1}, 1
          s_lshl_b32 s{sT2}, s{sW}, 3
          s_add_u32 s{sT1}, s{sT1}, s{sT2}
          s_mul_i32 s{sT2}, s{sJ}, 72
          s_add_u32 s{sT1}, s{sT1}, s{sT2}
          s_mul_i32 s{sWOBASE}, s{sT1}, 1152
          s_lshl_b32 s{sT1}, s{sJ}, 5
          s_add_u32 s{sT1}, s{sT1}, s{sT}
          s_mul_i32 s{sPBASE}, s{sT1}, 73728
          s_lshl_b32 s{sT1}, s{sG}, 11
          s_add_u32 s{sPBASE}, s{sPBASE}, s{sT1}
          s_add_u32 s{sPBASE}, s{sPBASE}, {WS_PART}
          s_and_b32 s{sT1}, s{sQ}, 1
          s_cmp_eq_u32 s{sT1}, s{sG}
          s_cselect_b32 s{sACT}, 1, 0
          s_mov_b32 s{sC}, {f32(18 ** -0.5 * 1.4426950408889634)}
          v_mov_b32 v{vC2}, {f32(-2.0 * 1.4426950408889634 * 0.7978845608028654 * 0.044715)}""")
    for _ in range(4):
        dma_qkv(a)
    PF = AXB
    a(f"""v_mul_u32_u24 v{VT}, 57, v{vLANE}
          v_lshrrev_b32 v{VT}, 9, v{VT}
          v_mul_u32_u24 v{VT+1}, 9, v{VT}
          v_sub_u32 v{VT+1}, v{vLANE}, v{VT+1}
          s_mul_i32 s{sT1}, s{sT}, 18
          s_cmp_lt_u32 s{sW}, 3
          s_cbranch_scc1 L_pf_w1
          s_cmp_lt_u32 s{sW}, 6
          s_cbranch_scc1 L_pf_w2
          s_sub_u32 s{sT2}, s{sW}, 6
          s_mul_i32 s{sT2}, s{sT2}, 9
          s_add_u32 s{sT1}, s{sT1}, s{sT2}
          s_mul_i32 s{sT1}, s{sT1}, 3456
          s_mul_i32 s{sT2}, s{sJ}, 144
          s_add_u32 s{sT1}, s{sT1}, s{sT2}
          v_mul_u32_u24 v{VT+1}, 3456, v{VT+1}
          v_lshrrev_b32 v{VT+4}, 1, v{VT}
          v_mul_u32_u24 v{VT+4}, 1152, v{VT+4}
          v_and_b32 v{VT+5}, 1, v{VT}
          v_mul_u32_u24 v{VT+5}, 140, v{VT+5}
          v_add3_u32 v{VT+1}, v{VT+1}, v{VT+4}, v{VT+5}
          v_cmp_gt_u32 vcc, 6, v{VT}
          s_and_saveexec_b64 {sr(sM1,2)}, vcc
          buffer_load_dword v{PF}, v{VT+1}, {sr(SQKV,4)}, s{sT1} offen
          s_mov_b64 exec, -1
          s_mul_i32 s{sT1}, s{sJ}, {72*1152}
          s_mul_i32 s{sT2}, s{sT}, {21*128}
          s_add_u32 s{sT1}, s{sT1}, s{sT2}
          v_lshlrev_b32 v{VT+1}, 7, v{vLANE}
          v_cmp_gt_u32 vcc, 21, v{vLANE}
          s_and_saveexec_b64 {sr(sM1,2)}, vcc
          buffer_load_dword v{PF+1}, v{VT+1}, {sr(SWO,4)}, s{sT1} offen
          s_mov_b64 exec, -1
          s_branch L_pf_done
          L_pf_w1:
          s_mul_i32 s{sT2}, s{sW}, 6
          s_add_u32 s{sT1}, s{sT1}, s{sT2}
          s_mul_i32 s{sT1}, s{sT1}, 9216
          s_mul_i32 s{sT2}, s{sJ}, 1152
          s_add_u32 s{sT1}, s{sT1}, s{sT2}
          v_mul_u32_u24 v{VT+4}, 9216, v{VT}
          v_lshl_add_u32 v{VT+1}, v{VT+1}, 7, v{VT+4}
          v_cmp_gt_u32 vcc, 6, v{VT}
          s_and_saveexec_b64 {sr(sM1,2)}, vcc
          buffer_load_dword v{PF}, v{VT+1}, {sr(SW1,4)}, s{sT1} offen
          buffer_load_dword v{PF+1}, v{VT+1}, {sr(SW1,4)}, s{sT1} offen
          s_mov_b64 exec, -1
          s_branch L_pf_done
          L_pf_w2:
          s_sub_u32 s{sT2}, s{sW}, 3
          s_mul_i32 s{sT2}, s{sT2}, 6
          s_add_u32 s{sT1}, s{sT1}, s{sT2}
          s_mul_i32 s{sT2}, s{sJ}, 576
          s_add_u32 s{sT1}, s{sT1}, s{sT2}
          s_mul_i32 s{sT1}, s{sT1}, 1152
          v_lshlrev_b32 v{VT+1}, 7, v{vLANE}
          v_cmp_gt_u32 vcc, 54, v{vLANE}
          s_and_saveexec_b64 {sr(sM1,2)}, vcc
          buffer_load_dword v{PF}, v{VT+1}, {sr(SW2,4)}, s{sT1} offen
          buffer_load_dword v{PF+1}, v{VT+1}, {sr(SW2,4)}, s{sT1} offen
          s_mov_b64 exec, -1
          L_pf_done:""")
    a("s_waitcnt vmcnt(10)")
    a(f"""v_lshlrev_b32 v{VT+4}, 16, v{VT+3}
          v_and_b32 v{VT+5}, 0xffff0000, v{VT+3}
          v_lshlrev_b32 v{VT+2}, 3, v0
          v_add_u32 v{VT+2}, {BOFF}, v{VT+2}
          v_cmp_gt_u32 vcc, 288, v0
          s_and_saveexec_b64 {sr(sM1,2)}, vcc
          ds_write_b64 v{VT+2}, {vr(VT+4,2)}
          s_mov_b64 exec, -1""")
    for i in range(36):
        a(f"v_lshlrev_b32 v{XF+2*i}, 16, v{XR+i}\nv_and_b32 v{XF+2*i+1}, 0xffff0000, v{XR+i}")
    A0, A1 = VT, VT + 2

    def rowsum(dst):
        a(f"""v_pk_add_f32 {vr(A0,2)}, {vr(A0,2)}, {vr(A1,2)}
              v_add_f32 v{dst}, v{A0}, v{A0+1}
              s_nop 1
              v_add_f32_dpp v{dst}, v{dst}, v{dst} row_ror:8 row_mask:0xf bank_mask:0xf
              v_mov_b32 v{A1}, v{dst}
              s_nop 1
              v_permlane16_swap_b32 v{dst}, v{A1}
              v_add_f32 v{dst}, v{dst}, v{A1}
              v_mov_b32 v{A1}, v{dst}
              s_nop 1
              v_permlane32_swap_b32 v{dst}, v{A1}
              v_add_f32 v{dst}, v{dst}, v{A1}""")

    a(f"v_pk_add_f32 {vr(A0,2)}, {vr(XF,2)}, {vr(XF+2,2)}\nv_pk_add_f32 {vr(A1,2)}, {vr(XF+4,2)}, {vr(XF+6,2)}")
    for i in range(4, 36):
        d = A0 if i % 2 == 0 else A1
        a(f"v_pk_add_f32 {vr(d,2)}, {vr(d,2)}, {vr(XF+2*i,2)}")
    MEAN = VT + 4
    rowsum(MEAN)
    a(f"""v_mul_f32 v{MEAN}, {f32(-1.0/576)}, v{MEAN}
          v_mov_b32 v{MEAN+1}, v{MEAN}""")
    for i in range(36):
        a(f"v_pk_add_f32 {vr(XF+2*i,2)}, {vr(XF+2*i,2)}, {vr(MEAN,2)}")
    a(f"v_pk_mul_f32 {vr(A0,2)}, {vr(XF,2)}, {vr(XF,2)}\nv_pk_mul_f32 {vr(A1,2)}, {vr(XF+2,2)}, {vr(XF+2,2)}")
    for i in range(2, 36):
        d = A0 if i % 2 == 0 else A1
        a(f"v_pk_fma_f32 {vr(d,2)}, {vr(XF+2*i,2)}, {vr(XF+2*i,2)}, {vr(d,2)}")
    VAR = VT + 6
    rowsum(VAR)
    a(f"""v_cvt_pk_bf16_f32 v{A0}, v{MEAN}, v{MEAN}
          v_lshlrev_b32 v{A0}, 16, v{A0}
          v_sub_f32 v{MEAN}, v{A0}, v{MEAN}
          v_mov_b32 v{MEAN+1}, v{MEAN}
          v_mul_f32 v{VAR}, {f32(1.0/576)}, v{VAR}
          v_cvt_pk_bf16_f32 v{VAR}, v{VAR}, v{VAR}
          v_lshlrev_b32 v{VAR}, 16, v{VAR}
          v_add_f32 v{VAR}, {f32(1e-5)}, v{VAR}
          v_cvt_pk_bf16_f32 v{VAR}, v{VAR}, v{VAR}
          v_lshlrev_b32 v{VAR}, 16, v{VAR}
          v_sqrt_f32 v{VAR}, v{VAR}
          s_nop 0
          v_cvt_pk_bf16_f32 v{VAR}, v{VAR}, v{VAR}
          v_lshlrev_b32 v{VAR}, 16, v{VAR}
          v_rcp_f32 v{VAR}, v{VAR}
          s_nop 0
          v_mov_b32 v{VAR+1}, v{VAR}""")
    for i in range(36):
        a(f"v_pk_add_f32 {vr(XF+2*i,2)}, {vr(XF+2*i,2)}, {vr(MEAN,2)}")
    for i in range(36):
        a(f"v_cvt_pk_bf16_f32 v{XR+i}, v{XF+2*i}, v{XF+2*i+1}")
    for i in range(36):
        a(f"v_lshlrev_b32 v{XF+2*i}, 16, v{XR+i}\nv_and_b32 v{XF+2*i+1}, 0xffff0000, v{XR+i}")
    for i in range(36):
        a(f"v_pk_mul_f32 {vr(XF+2*i,2)}, {vr(XF+2*i,2)}, {vr(VAR,2)}")
    for i in range(36):
        a(f"v_cvt_pk_bf16_f32 v{XR+i}, v{XF+2*i}, v{XF+2*i+1}")
    a(f"""v_lshrrev_b32 v{A0}, 3, v{vLANE}
          v_lshlrev_b32 v{A0}, 9, v{A0}
          v_and_b32 v{A0+1}, 7, v{vLANE}
          v_lshl_add_u32 v{A0}, v{A0+1}, 4, v{A0}
          s_mul_i32 s{sT1}, s{sG}, {HG}
          s_lshl_b32 s{sT2}, s{sQ}, 7
          s_add_u32 s{sT2}, s{sT2}, s{sT1}
          s_add_u32 s{sT2}, s{sT2}, {HOFF}
          v_add_u32 v{A0}, s{sT2}, v{A0}""")
    for i in range(9):
        a(f"ds_write_b128 v{A0}, {vr(XR+4*i,4)} offset:{4096*i}")
    a(f"""s_add_u32 s{sT1}, s{sT1}, {HOFF}
          v_add_u32 v{vHADDR}, s{sT1}, v{vL16}
          s_waitcnt vmcnt(6) lgkmcnt(0)
          s_barrier""")
    for s in range(36):
        a(f"ds_read_b128 {vr(VB+4*s,4)}, v{vHADDR} offset:{1024*s}")
    a(f"""v_lshl_add_u32 v{vAL}, v{vHALF}, 12, v{vINB}
          s_lshl_b32 s{sT1}, s{sQ}, 8
          v_add_u32 v{vAL}, s{sT1}, v{vAL}""")
    next_addr(a, vA0)
    a.wait_lds_all()
    for s in range(2):
        a_reads(a, ABUF + 4 * s, vA0, s * 8192, 2048, f"a{s}")
        a_reads(a, ABUF2 + 4 * s, vA0, s * 8192 + 1024, 2048, f"a{s}")
    lq0 = list(a.lq)
    a(f"s_cmp_eq_u32 s{sQ}, 0\ns_cbranch_scc0 L_qkv_sw")
    qkv_body(a, False)
    a("s_branch L_qkv_done\nL_qkv_sw:")
    a.lq = list(lq0)
    qkv_body(a, True)
    a("L_qkv_done:")
    assert not a.lq
    a(f"""s_lshl_b32 s{sT5}, s{sJ}, 6
          s_lshl_b32 s{sT1}, s{sT}, 1
          s_add_u32 s{sT5}, s{sT5}, s{sT1}
          s_add_u32 s{sT5}, s{sT5}, s{sG}
          s_mul_i32 s{sT5}, s{sT5}, {4*REC}
          s_add_u32 s{sT5}, s{sT5}, {WS_QKV + REC}
          v_mov_b32 v{vXA}, {REC}
          s_nop 7""")
    qk_store(a, ACC[0], sQ)
    a(f"s_cmp_eq_u32 s{sQ}, 0\ns_cbranch_scc0 L_vst\ns_mov_b32 s{sT2}, 4")
    qk_store(a, ACC[1], sT2)
    a("s_branch L_st_done\nL_vst:")
    v_store(a, ACC[1])
    a("L_st_done:")
    a(f"""v_sub_u32 v{vA0}, v{vA0}, v{vAL}
          v_lshl_add_u32 v{vAL}, v{vHALF}, 11, v{vINB}
          s_lshr_b32 s{sT1}, s{sQ}, 1
          s_lshl_b32 s{sT1}, s{sT1}, 8
          v_add_u32 v{vAL2}, s{sT1}, v{vAL}
          s_lshl_b32 s{sT1}, s{sQ}, 8
          v_add_u32 v{vAL}, s{sT1}, v{vAL}
          v_add_u32 v{vA0}, v{vA0}, v{vAL}
          s_mov_b32 s{sR}, 0
          s_lshl_b32 s{sT1}, s{sQ}, 7
          s_add_u32 s{sT1}, s{sT1}, {BOFF}
          v_lshl_add_u32 v{vBADDR}, v{vHALF}, 4, s{sT1}
          s_lshl_b32 s{sT1}, s{sQ}, 11
          v_add_u32 v{vHADDR}, s{sT1}, v{vHADDR}""")
    a(f"v_mov_b32 v{VT+2}, v{vDV}")
    set_ffn_voff(a, 1152)
    a(f"v_mov_b32 v{vDV2}, v{vDV}\nv_mov_b32 v{vDV}, v{VT+2}\ns_nop 1")
    bias_reads(a, ACC[0])
    for s in range(2):
        a_reads(a, ABUF + 4 * s, vA0, s * 4096, 1024, f"a{s}")
    lq0 = list(a.lq)
    a("L_f1_loop:")
    ffn1_body(a, 0, "f1a")
    lqa = list(a.lq)
    a(f"s_cmp_eq_u32 s{sR}, 5\ns_cbranch_scc1 L_f1_fin")
    a.lq = list(lq0)
    a("s_waitcnt lgkmcnt(%d)" % len(lq0))
    ffn1_body(a, 1, "f1b")
    a("s_waitcnt lgkmcnt(%d)" % len(lq0))
    a(f"""s_cmp_lg_u32 s{sR}, 4
          s_cbranch_scc1 L_f1_loop
          s_cmp_lg_u32 s{sACT}, 0
          s_cbranch_scc1 L_f1_loop""")
    a.lq = []
    ffn1_body(a, 0, "f1l", lite=True)
    a("s_branch L_f1_done")
    a("L_f1_fin:\ns_nop 7\ns_nop 3")
    for op in gelu_ops(ACC[0]):
        a(op)
    ffn1_epi_tail(a, ACC[0])
    a("L_f1_done:")
    a.wait_lds_all()
    attention(a)
    a(f"""s_barrier
          s_mul_i32 s{sT1}, s{sG}, {HG}
          s_add_u32 s{sT1}, s{sT1}, {HOFF}
          v_add_u32 v{vHADDR}, s{sT1}, v{vL16}""")
    for s in range(36):
        a(f"ds_read_b128 {vr(VB+4*s,4)}, v{vHADDR} offset:{1024*s}")
    a(f"""v_bfe_u32 v{vBADDR}, v{vLANE}, 2, 3
          v_lshrrev_b32 v{vC2}, 1, v{vBADDR}
          v_mul_u32_u24 v{vC2}, 18, v{vC2}
          v_and_b32 v{vBADDR}, 1, v{vBADDR}
          v_add3_u32 v{vC2}, v{vC2}, v{vBADDR}, 16
          v_mul_u32_u24 v{vC2}, 1152, v{vC2}
          v_lshl_add_u32 v{vC2}, v{vHALF}, 6, v{vC2}
          v_and_b32 v{vBADDR}, 3, v{vLANE}
          v_lshl_add_u32 v{vC2}, v{vBADDR}, 4, v{vC2}
          s_mul_i32 s{sT1}, s{sG}, 5120
          s_add_u32 s{sT1}, s{sT1}, {OF}
          v_add_u32 v{vHADDR}, s{sT1}, v{vL16}
          s_lshl_b32 s{sT2}, s{sQ}, 10
          v_add_u32 v{vBADDR}, s{sT2}, v{vHADDR}
          s_lshl_b32 s{sT2}, s{sQ}, 2
          v_add_u32 v{vXA}, s{sT2}, v{vHADDR}
          s_waitcnt lgkmcnt(0)
          s_barrier
          ds_write_b128 v{vBADDR}, {vr(VT,4)}
          ds_write_b32 v{vXA}, v{VT+4} offset:4096
          s_mul_i32 s{sT1}, s{sJ}, {72*1152}
          s_lshl_b32 s{sT2}, s{sW}, 7
          s_add_u32 s{sT2}, s{sT2}, s{sT1}
          s_lshl_b32 s{sT3}, s{sW}, 10
          s_add_u32 m0, s{sT3}, {XB}
          s_add_u32 s{sT1}, s{sT1}, 1024
          buffer_load_dwordx4 v{vC2}, {sr(SWO,4)}, s{sT2} offen lds
          s_mov_b32 m0, {XB + 8192}
          s_cmp_eq_u32 s{sW}, 0
          s_cbranch_scc0 L_x_skip
          buffer_load_dwordx4 v{vC2}, {sr(SWO,4)}, s{sT1} offen lds
          L_x_skip:
          s_waitcnt lgkmcnt(0)
          s_barrier""")
    for k in range(5):
        a(f"ds_read_b128 {vr(VOB+4*k,4)}, v{vHADDR} offset:{1024*k}")
    a(f"""s_sub_u32 s{sT1}, s{sRD}, {SLOT}
          s_cmp_lt_i32 s{sT1}, 0
          s_cselect_b32 s{sT1}, {RING - SLOT}, s{sT1}
          v_lshl_add_u32 v{vAL}, v{vHALF}, 10, v{vINB}
          s_lshr_b32 s{sT2}, s{sQ}, 1
          s_lshl_b32 s{sT2}, s{sT2}, 8
          v_add_u32 v{vAL2}, s{sT2}, v{vAL}
          s_lshl_b32 s{sT2}, s{sQ}, 8
          v_add_u32 v{vAL}, s{sT2}, v{vAL}
          v_add_u32 v{vA0}, s{sT1}, v{vAL}
          s_mov_b32 s{sR}, 0
          s_mov_b32 s{sT5}, 0x80000000""")
    a.wait_lds_all()
    for s in range(2):
        a_reads(a, ABUF + 4 * s, vA0, s * 4096, 2048, f"a{s}")
    lq0 = list(a.lq)
    a("L_f2_loop:")
    ffn2_body(a, 0, "f2a")
    a(f"s_cmp_eq_u32 s{sR}, 5\ns_cbranch_scc1 L_f2_fin")
    a.lq = list(lq0)
    ffn2_body(a, 1, "f2b")
    a(f"""s_cmp_lg_u32 s{sR}, 4
          s_cbranch_scc1 L_f2_loop
          s_cmp_lg_u32 s{sACT}, 0
          s_cbranch_scc1 L_f2_loop""")
    a.lq = []
    a("s_nop 7\ns_nop 3")
    ffn2_body(a, 0, "f2l", lite=True)
    a("s_branch L_main_end")
    a("L_f2_fin:\ns_nop 7\ns_nop 3")
    for op in ffn2_epi_ops(ACC[0]):
        a(op)
    a("L_main_end:\ns_endpgm")


def reduce_kernel(a):
    a(f"""s_cmp_ge_u32 s2, 576
          s_cbranch_scc1 L_red_end
          s_load_dwordx2 s[4:5], s[0:1], 0
          s_load_dwordx2 s[8:9], s[0:1], 56
          s_load_dwordx2 s[10:11], s[0:1], 64
          s_load_dwordx2 s[12:13], s[0:1], 80
          v_lshrrev_b32 v1, 6, v0
          v_and_b32 v2, 63, v0
          v_readfirstlane_b32 s3, v1
          v_and_b32 v3, 31, v0
          v_bfe_u32 v4, v0, 5, 1
          v_lshlrev_b32 v5, 4, v2
          s_waitcnt lgkmcnt(0)""")
    srd(a, 16, 4, 2048 * 576 * 2)
    srd(a, 20, 8, 576 * 2)
    srd(a, 24, 10, 2048 * 576 * 2)
    srd(a, 28, 12, WS_BYTES)
    a(f"""s_mul_i32 s32, s2, 3641
          s_lshr_b32 s32, s32, 16
          s_mul_i32 s33, s32, 18
          s_sub_u32 s33, s2, s33
          s_lshl_b32 s34, s2, 2
          s_add_u32 s34, s34, s3
          s_lshl_b32 s34, s34, 10
          s_add_u32 s34, s34, {WS_PART}""")
    for j in range(8):
        a(f"buffer_load_dwordx4 {vr(16+4*j,4)}, v5, s[28:31], s34 offen")
        if j < 7:
            a(f"s_add_u32 s34, s34, {32*73728}")
    a(f"""s_lshr_b32 s35, s3, 1
          s_and_b32 s36, s3, 1
          s_lshl_b32 s37, s32, 1
          s_add_u32 s37, s37, s35
          s_mul_i32 s37, s37, {32*1152}
          s_lshl_b32 s38, s33, 6
          s_lshl_b32 s36, s36, 5
          s_add_u32 s38, s38, s36
          s_add_u32 s37, s37, s38
          v_lshlrev_b32 v6, 3, v4
          v_mul_u32_u24 v7, 1152, v3
          v_add_u32 v7, v7, v6
          buffer_load_dwordx2 v[48:49], v7, s[16:19], s37 offen
          buffer_load_dwordx2 v[50:51], v7, s[16:19], s37 offen offset:16
          buffer_load_dwordx2 v[52:53], v6, s[20:23], s38 offen
          buffer_load_dwordx2 v[54:55], v6, s[20:23], s38 offen offset:16
          s_waitcnt vmcnt(0)""")
    for r in range(4):
        a(f"""v_lshlrev_b32 v{56+2*r}, 16, v{48+r}
              v_and_b32 v{57+2*r}, 0xffff0000, v{48+r}
              v_lshlrev_b32 v8, 16, v{52+r}
              v_and_b32 v9, 0xffff0000, v{52+r}
              v_add_f32 v{56+2*r}, v{56+2*r}, v8
              v_add_f32 v{57+2*r}, v{57+2*r}, v9""")
    for j in range(8):
        for r in range(4):
            a(f"""v_lshlrev_b32 v8, 16, v{16+4*j+r}
                  v_and_b32 v9, 0xffff0000, v{16+4*j+r}
                  v_add_f32 v{56+2*r}, v{56+2*r}, v8
                  v_add_f32 v{57+2*r}, v{57+2*r}, v9""")
    for r in range(4):
        a(f"v_cvt_pk_bf16_f32 v{48+r}, v{56+2*r}, v{57+2*r}")
    a(f"""buffer_store_dwordx2 v[48:49], v7, s[24:27], s37 offen
          buffer_store_dwordx2 v[50:51], v7, s[24:27], s37 offen offset:16
          L_red_end:
          s_endpgm""")


def descriptor(name, vgpr, sgpr):
    return f""".amdhsa_kernel {name}
  .amdhsa_next_free_vgpr {vgpr}
  .amdhsa_next_free_sgpr {sgpr}
  .amdhsa_accum_offset {vgpr}
  .amdhsa_group_segment_fixed_size 0
  .amdhsa_kernarg_size 88
  .amdhsa_user_sgpr_count 2
  .amdhsa_user_sgpr_kernarg_segment_ptr 1
  .amdhsa_system_sgpr_workgroup_id_x 1
.end_amdhsa_kernel
"""


def build():
    out = []
    out.append(f"; @launch kernel={NAME}_kernel grid=(256,1,1) block=(512,1,1) lds={LDS_BYTES}")
    out.append(f"; @launch kernel=reduce_kernel grid=(576,1,1) block=(256,1,1) lds=0")
    out.append('.amdgcn_target "amdgcn-amd-amdhsa--gfx950"\n.text')
    a = Asm()
    a(f".globl {NAME}_kernel\n.p2align 8\n.type {NAME}_kernel,@function\n{NAME}_kernel:")
    main_kernel(a)
    a(".globl reduce_kernel\n.p2align 8\n.type reduce_kernel,@function\nreduce_kernel:")
    reduce_kernel(a)
    out += a.L
    out.append('.section .rodata,"a"\n.p2align 6')
    out.append(descriptor(f"{NAME}_kernel", 256, 100))
    out.append(".p2align 6")
    out.append(descriptor("reduce_kernel", 64, 48))
    return "\n".join(out) + "\n"


if __name__ == "__main__":
    path = sys.argv[1] if len(sys.argv) > 1 else f"cdna_kernels/{NAME}.s"
    open(path, "w").write(build())
    print("wrote", path)
```

```python
import struct
import sys

NAME = "parallel_sum__sliding_block__dense_activation_gelu__prompt"
STAMPS = False
ABL = set()


def f32(x):
    return "0x%08x" % struct.unpack("<I", struct.pack("<f", x))[0]


def lines(txt):
    return [x.strip() for x in txt.strip("\n").split("\n") if x.strip()]


class Asm:
    def __init__(self):
        self.L = []
        self.lq = []
        self.vq = []
        self.n = 0

    def __call__(self, txt):
        if isinstance(txt, list):
            for t in txt:
                self(t)
            return
        if isinstance(txt, tuple):
            (self.lds if txt[0] == "l" else self.vm)(txt[1], txt[2])
            return
        self.L += lines(txt)

    def lds(self, txt, tag):
        self(txt)
        self.lq.append(tag)

    def vm(self, txt, tag):
        self(txt)
        self.vq.append(tag)

    @staticmethod
    def _need(q, tag):
        if tag not in q:
            return None, q
        idx = max(i for i, t in enumerate(q) if t == tag)
        return len(q) - 1 - idx, q[idx + 1:]

    def wait(self, ltag=None, vtag=None):
        parts = []
        if vtag is not None:
            n, self.vq = self._need(self.vq, vtag)
            if n is not None:
                parts.append(f"vmcnt({min(n, 63)})")
        if ltag is not None:
            n, self.lq = self._need(self.lq, ltag)
            if n is not None:
                parts.append(f"lgkmcnt({min(n, 15)})")
        if parts:
            self("s_waitcnt " + " ".join(parts))

    def wait_lds(self, tag):
        self.wait(ltag=tag)

    def wait_lds_all(self):
        self("s_waitcnt lgkmcnt(0)")
        self.lq = []

    def wait_vm_all(self):
        self("s_waitcnt vmcnt(0)")
        self.vq = []

    def uid(self):
        self.n += 1
        return self.n

    def snap(self):
        return list(self.lq), list(self.vq)

    def restore(self, st):
        self.lq, self.vq = list(st[0]), list(st[1])


SLOT = 16384
HOFF = 5 * SLOT
HG = 36864
BOFF = HOFF + 2 * HG
XB = 8 * SLOT
OF = XB + 9216
QOFF = 32 * 1024
QXOFF = BOFF + 2304
LDS_BYTES = QXOFF + 1024

TB = 4608
WS_K = 0
WS_V = 4 << 20
WS_FLAG = 8 << 20
WS_PART = 16 << 20
WS_BYTES = 268435456

P_X, P_WQKV, P_WO, P_W1, P_B1, P_W2, P_B2 = 4, 6, 8, 12, 14, 16, 18
P_OUT, P_DBG, P_WS = 20, 22, 24
sPAN = 4
SX, SQKV, SW1, SKV, SB1, SWO, SW2, SWS, SD, SOUT, SB = 28, 32, 36, 40, 44, 48, 52, 56, 60, 64, 16
SDBG = 44
sW, sQ, sG, sJ, sT = 68, 69, 70, 71, 72
sQB, sW1Q, sW1S, sW2Q, sW2S, sWOQ, sH4 = 73, 74, 75, 76, 77, 78, 79
sT0, sT1, sT2, sT3, sT4, sT5 = 80, 81, 82, 83, 84, 85
sPB, sSB, sC, sW2K, sHB, sDO, sKVF, sVOFF = 86, 87, 88, 89, 90, 91, 92, 93
sQ2K, sMINE, sSTG, sRK = 13, 14, 20, 21
sM = 26
sNON = 96
sST = 100

vLANE, vN, vHALF, vINB, vB0, vB1, vDV, vDVb, vL16, vN16, vC2, vHW, vBA, vKV, vXA = range(1, 16)
VB = 16
VOB = 160
ACC = (180, 196)
ACF = 228
ABUF = 212
ABUF2 = 228
VQ0, VQ1 = 180, 184
AXB = 244
VT = 248


def vr(b, n):
    return f"v[{b}:{b+n-1}]"


def sr(b, n):
    return f"s[{b}:{b+n-1}]"


def stamp(a, i):
    if not STAMPS:
        return
    if i == 0:
        a("s_memtime s[94:95]")
        return
    a(f"s_memtime {sr(sST,2)}\ns_waitcnt lgkmcnt(0)\nv_writelane_b32 v0, s{sST}, {i}")


def rstamp(a, i):
    if not STAMPS:
        return
    a(f"s_memrealtime {sr(sST,2)}\ns_waitcnt lgkmcnt(0)\nv_writelane_b32 v0, s{sST}, {32+i}")


def stamp_flush(a):
    if not STAMPS:
        return
    a(f"""v_writelane_b32 v0, s94, 0
          s_memrealtime {sr(sST,2)}
          s_waitcnt lgkmcnt(0)
          v_writelane_b32 v0, s{sST}, 31
          s_lshl_b32 s{sT1}, s2, 3
          s_add_u32 s{sT1}, s{sT1}, s{sW}
          s_lshl_b32 s{sT1}, s{sT1}, 8
          s_add_u32 s{sT1}, s{sT1}, {128 << 20}
          v_lshlrev_b32 v1, 2, v{vLANE}
          buffer_store_dword v0, v1, {sr(SWS,4)}, s{sT1} offen
          s_mov_b64 exec, -1""")


def srd(a, s, p, nbytes):
    a(f"""s_mov_b32 s{s}, s{p}
          s_and_b32 s{s+1}, s{p+1}, 0xffff
          s_mov_b32 s{s+2}, {nbytes}
          s_mov_b32 s{s+3}, 0x20000""")


def mfma(a, d, x, y, c=None):
    cs = vr(d, 16) if c is None else c
    a(f"v_mfma_f32_32x32x16_bf16 {vr(d,16)}, {vr(x,4)}, {vr(y,4)}, {cs}")


K_F1, K_K, K_V, K_F2, K_END = 18, 59, 62, 65, 110
PD1, PD2 = 4, 7
K_STREAM = [0, 3 * TB, 3 * TB + SLOT]


def slot_of(k):
    return (k % 5) * SLOT if k < K_F2 else ((k - K_F2) % 8) * SLOT


def voff_ops(pitch, t0=VT + 6, t1=VT + 7):
    return lines(f"""v_bfe_u32 v{t0}, v{vLANE}, 2, 2
          v_lshl_add_u32 v{t0}, v{vHALF}, 2, v{t0}
          v_mul_u32_u24 v{t0}, {pitch}, v{t0}
          v_bfe_u32 v{t1}, v{vLANE}, 4, 1
          v_lshl_add_u32 v{t0}, v{t1}, 6, v{t0}
          v_and_b32 v{t1}, 3, v{vLANE}
          v_lshl_add_u32 v{vDV}, v{t1}, 4, v{t0}
          v_add_u32 v{vDVb}, {8 * pitch - 1024}, v{vDV}""")


def ld2(srd_, k, va=vDV, vb=vDVb, soff=None, flags=""):
    so = soff or f"s{sDO}"
    return [("v", f"buffer_load_dwordx4 v{va}, {sr(srd_,4)}, {so} offen {flags}lds", f"D{k}"),
            ("v", f"buffer_load_dwordx4 v{vb}, {sr(srd_,4)}, {so} offen offset:1024 {flags}lds", f"D{k}")]


def hs_src(k, half):
    if k < K_K:
        hs = 2 * (k - K_F1) + half
        if hs >= 81:
            return None
        h, c = divmod(hs, 9)
        return SW1, "w1", h, c * 64 * 9216
    hs = 2 * (k - K_F2) + half
    h, c = divmod(hs, 10)
    if c < 9:
        return SW2, "w2", h, c * 64 * 1152
    return SWO, "wo", h, 0


def dma_half(k, half):
    if k >= K_END:
        return []
    m0 = f"s_add_u32 m0, s{sQ2K}, {slot_of(k) + half * 8192}"
    if K_K <= k < K_F2:
        so = (K_STREAM[k - K_K] if k < K_V else (k - K_V) * SLOT) + half * 8192
        return [m0, f"v_add_u32 v{vXA}, {so}, v{vKV}"] + ld2(SKV, k, vXA, vXA, "0" if k < K_V else f"s{sVOFF}", "sc1 ")
    src = hs_src(k, half)
    if src is None:
        return []
    srd_, kind, h, const = src
    base = {"w1": sW1Q, "w2": sW2Q, "wo": sWOQ}[kind]
    ops = [m0, f"s_add_u32 s{sDO}, s{sPAN+h}, s{base}"]
    if const:
        ops.append(f"s_add_u32 s{sDO}, s{sDO}, {const}")
    return ops + ld2(srd_, k)


def dma_sym(k):
    m0 = f"s_add_u32 m0, s{sW2K}, {slot_of(k)}"
    if k < K_F1:
        return [m0, f"s_add_u32 s{sDO}, s{sQB}, {k * 32 * 3456}"] + ld2(SQKV, k)
    if K_K <= k < K_F2:
        so = K_STREAM[k - K_K] if k < K_V else (k - K_V) * SLOT
        return [m0, f"s_lshl_b32 s{sDO}, s{sSB}, 13", f"s_add_u32 s{sDO}, s{sDO}, {so}", f"v_add_u32 v{vXA}, s{sDO}, v{vKV}"] + \
            ld2(SKV, k, vXA, vXA, "0" if k < K_V else f"s{sVOFF}", "sc1 ")
    s0, s1 = hs_src(k, 0), hs_src(k, 1)
    pre = []
    if k == K_F1:
        pre = voff_ops(9216)
    if k == K_F2:
        pre = voff_ops(1152, 238, 239)
    if s0[1] == s1[1]:
        assert s0[2] == s1[2]
        base = {"w1": sW1S, "w2": sW2S}[s0[1]]
        return pre + [m0, f"s_add_u32 s{sDO}, s{sPAN+s0[2]}, s{base}", f"s_add_u32 s{sDO}, s{sDO}, {s0[3]}"] + ld2(s0[0], k)
    assert s0[1] == "w2" and s1[1] == "wo" and s0[3] == 8 * 64 * 1152
    return [m0, f"s_add_u32 s{sDO}, s{sPAN+s0[2]}, s{sH4}"] + ld2(SD, k)


def ahead(k):
    return k + (PD1 if k < K_F2 else PD2)


FINE = {}


def top(a, k, ltag=None):
    a.wait(ltag=ltag, vtag=f"D{k+1}")
    a("s_barrier")


def lds_ref(b0, b1, addr):
    return (b0, addr) if addr < 65536 else (b1, addr - 65536)


def a_read_ops(buf, b0, b1, addr, estride, tag):
    v, o = lds_ref(b0, b1, addr)
    assert o + estride < 65536
    return [("l", f"ds_read_b64_tr_b16 {vr(buf,2)}, v{v} offset:{o}", tag),
            ("l", f"ds_read_b64_tr_b16 {vr(buf+2,2)}, v{v} offset:{o+estride}", tag)]


def gelu_ops(acc):
    C1 = f32(-2.0 * 1.4426950408889634 * 0.7978845608028654)
    ops = []
    for p in range(0, 16, 4):
        xs = [acc + p + i for i in range(4)]
        ts = [VT + i for i in range(4)]
        ops += [f"v_mul_f32 v{t}, v{x}, v{x}" for x, t in zip(xs, ts)]
        ops += [f"v_fmaak_f32 v{t}, v{t}, v{vC2}, {C1}" for t in ts]
        ops += [f"v_mul_f32 v{t}, v{x}, v{t}" for x, t in zip(xs, ts)]
        ops += [f"v_exp_f32 v{t}, v{t}" for t in ts]
        ops += [f"v_add_f32 v{t}, 1.0, v{t}" for t in ts]
        ops += [f"v_rcp_f32 v{t}, v{t}" for t in ts]
        ops += [f"v_mul_f32 v{t}, v{x}, v{t}" for x, t in zip(xs, ts)]
        ops += [f"v_cvt_pk_bf16_f32 v{acc+p//2}, v{ts[0]}, v{ts[1]}",
                f"v_cvt_pk_bf16_f32 v{acc+p//2+1}, v{ts[2]}, v{ts[3]}"]
    return ops


def bias_ops(acc, vaddr, off):
    return [("l", f"ds_read_b128 {vr(acc+4*c,4)}, v{vaddr} offset:{off+32*c}", "bias") for c in range(4)]


def hw_ops(acc, vaddr, off):
    return [("l", f"ds_write_b128 v{vaddr}, {vr(acc,4)} offset:{off}", "hw"),
            ("l", f"ds_write_b128 v{vaddr}, {vr(acc+4,4)} offset:{off+1024}", "hw")]


def pop(a, ops, n):
    for _ in range(n):
        if ops:
            a(ops.pop(0))


def w0_only(a, body):
    u = a.uid()
    a(f"s_cbranch_vccz L_w{u}")
    a(body)
    a(f"L_w{u}:")


DIST = 3


VF = 196


def poll_loop(a, load, ok_ops):
    u = a.uid()
    a(f"s_mov_b32 s{sT5}, 0\nL_p{u}:")
    a(ok_ops)
    a(f"""s_cbranch_scc1 L_pd{u}
          s_sleep 1""")
    a(load)
    a(f"""s_waitcnt vmcnt(0)
          s_add_u32 s{sT5}, s{sT5}, 1
          s_cmp_lt_u32 s{sT5}, 0x100000
          s_cbranch_scc1 L_p{u}
          L_pd{u}:""")


def kv_load():
    return f"buffer_load_dword v{AXB+2}, v{AXB+3}, {sr(SDBG,4)}, 0 offen sc1"


def kv_ok():
    return f"""v_readfirstlane_b32 s{sT0}, v{AXB+2}
          s_and_b32 s{sT0}, s{sT0}, s{sT3}
          s_cmp_eq_u32 s{sT0}, s{sT3}"""


def fl_load(which):
    return f"buffer_load_dwordx2 {vr(VF+4,2)}, v{VF+6}, {sr(SWS,4)}, s{sKVF} offen offset:{128*which} sc1"


def fl_ok():
    return f"""v_cmp_eq_u64 {sr(sM,2)}, {vr(VF+4,2)}, {vr(VF,2)}
          s_nop 1
          s_cmp_eq_u64 {sr(sM,2)}, -1"""


def fl_store(which):
    return f"buffer_store_dwordx2 {vr(VF,2)}, v{VF+7}, {sr(SWS,4)}, s{sKVF} offen offset:{128*which} sc1"


def pp_reads(k0, n, estride, h, s):
    i = n * h + s
    addr = slot_of(k0 + i // 8) + (i % 8) * 2048
    return a_read_ops(ABUF + 4 * (s % 4), vB0, vB1, addr, estride, f"a{h}_{s}")


def qkv_epilogue(a, tag):
    a(f"""s_lshl_b32 s{sT5}, s{sJ}, 6
          s_lshl_b32 s{sT1}, s{sT}, 1
          s_add_u32 s{sT5}, s{sT5}, s{sT1}
          s_add_u32 s{sT5}, s{sT5}, s{sG}
          s_mul_i32 s{sT5}, s{sT5}, {TB}
          s_lshl_b32 s{sT4}, s{sG}, 9
          s_add_u32 s{sT4}, s{sT4}, {QXOFF}
          v_xor_b32 v{VT+7}, 1, v{vHALF}
          s_mul_i32 s{sT1}, s{sJ}, 576
          s_mul_i32 s{sT2}, s{sRK}, 36
          s_add_u32 s{sT1}, s{sT1}, s{sT2}
          s_mul_i32 s{sT1}, s{sT1}, 1152
          s_mul_i32 s{sT2}, s{sW}, {41*128}
          s_add_u32 s{sT1}, s{sT1}, s{sT2}
          v_lshlrev_b32 v{VT+6}, 7, v{vLANE}
          s_lshl_b32 s{sT2}, s{sRK}, 3
          s_add_u32 s{sT2}, s{sT2}, s{sW}
          s_mul_i32 s{sT2}, s{sT2}, {6*128}
          s_mul_i32 s{sT3}, s{sJ}, {72*1152}
          s_add_u32 s{sT2}, s{sT2}, s{sT3}
          s_mov_b32 exec_hi, 0x1ff
          buffer_load_dword v{AXB}, v{VT+6}, {sr(SW2,4)}, s{sT1} offen
          s_mov_b64 exec, 63
          buffer_load_dword v{AXB+1}, v{VT+6}, {sr(SWO,4)}, s{sT2} offen
          s_mov_b64 exec, -1
          s_cmp_eq_u32 s{sQ}, 1
          s_cbranch_scc1 L_ep1{tag}
          s_cmp_eq_u32 s{sQ}, 2
          s_cbranch_scc1 L_ep2{tag}
          s_cmp_eq_u32 s{sQ}, 3
          s_cbranch_scc1 L_ep3{tag}""")
    qk_scatter(a, 0, ACC[0])
    qk_scatter(a, 4, ACC[1])
    a(f"s_branch L_epd{tag}")
    for q in (1, 2, 3):
        a(f"L_ep{q}{tag}:")
        qk_scatter(a, q, ACC[0])
        if q < 3:
            a(f"s_branch L_epv{tag}")
    a(f"L_epv{tag}:")
    v_store(a, ACC[1])
    a(f"L_epd{tag}:")
    a.vq += ["kv"] * 4
    a.wait_lds_all()


def bias_pre(h):
    return [f"s_lshl_b32 s{sT2}, s{sPAN+h}, 1", f"v_add_u32 v{VT+6}, s{sT2}, v{vBA}"] + bias_ops(ACF, VT + 6, 0)


def ffn1(a, sb):
    tag = "AB"[sb]
    if sb == 0:
        a(bias_pre(0))
        for s in range(DIST):
            a(pp_reads(K_F1, 36, 512, 0, s))
    for h in range(9):
        comp = (h % 2) == sb
        ops = []
        if not comp and h > 0:
            ops = gelu_ops(ACF) + [f"s_lshl_b32 s{sT2}, s{sPAN+h-1}, 5", f"v_add_u32 v{VT+6}, s{sT2}, v{vHW}"] + hw_ops(ACF, VT + 6, 0)
        for s in range(36):
            i = 36 * h + s
            k = K_F1 + i // 8
            if i % 8 == 0:
                if h == 3 and s == 4:
                    a.wait(vtag="kv")
                top(a, k, ltag=f"a{h}_{s}" if comp and s else None)
                if k == K_K - PD1 and sb == 1:
                    a(f"""s_sub_u32 s{sT2}, s{sT}, 4
                          s_max_i32 s{sT2}, s{sT2}, 0
                          s_lshl_b32 s{sT3}, 1, s{sT}
                          s_lshl_b32 s{sT2}, 1, s{sT2}
                          s_sub_u32 s{sT3}, s{sT3}, s{sT2}""")
                    a.wait(vtag="kvf")
                    poll_loop(a, kv_load(), kv_ok())
            if comp:
                if s == 0:
                    a.wait_lds("bias")
                a.wait_lds(f"a{h}_{s}")
                mfma(a, ACF, ABUF + 4 * (s % 4), VB + 4 * s)
                if s + DIST < 36:
                    a(pp_reads(K_F1, 36, 512, h, s + DIST))
            else:
                if s % 4 == 0:
                    d = dma_half(ahead(k), (i % 8) // 4)
                    if i + 4 >= 324:
                        d = d + dma_half(ahead(k), 1)
                    a(d[:-1])
                    last = d[-1:]
                    if s == 0 and ops:
                        a("s_nop 7\ns_nop 3")
                if s % 4 == 2:
                    a(last)
                if s >= 1:
                    pop(a, ops, 4)
                if s == 33:
                    assert not ops
                    if h <= 1:
                        qkv_epilogue(a, tag)
                    if h in (3, 4):
                        a(f"""s_lshl_b32 s{sT2}, s{sQ}, 10
                              s_add_u32 s{sT2}, s{sT2}, s{sSTG}
                              v_add_u32 v{VT+6}, s{sT2}, v{vL16}
                              s_lshl_b32 s{sT2}, s{sG}, 9
                              s_lshl_b32 s{sT3}, s{sQ}, 2
                              s_add_u32 s{sT2}, s{sT2}, s{sT3}
                              s_add_u32 s{sT2}, s{sT2}, {QXOFF}
                              v_add_u32 v{VT+7}, s{sT2}, v{vN16}""")
                        a.lds(f"ds_read_b128 {vr(VQ0,4)}, v{VT+6}", "q")
                        a.lds(f"ds_read_b32 v{VQ1}, v{VT+7}", "q")
                    if h < 8:
                        a(bias_pre(h + 1))
                if s == 35 and h == 3:
                    a(f"""s_lshl_b32 s{sT2}, 1, s{sT}
                          v_mov_b32 v{AXB+2}, s{sT2}
                          s_lshl_b32 s{sT2}, s{sJ}, 2
                          s_cmp_eq_u32 s{sW}, 0
                          s_cselect_b32 s{sT2}, s{sT2}, 0x1000
                          v_mov_b32 v{AXB+3}, s{sT2}
                          s_mov_b64 exec, 1""")
                    a.vm(f"buffer_atomic_or v{AXB+2}, v{AXB+3}, {sr(SDBG,4)}, 0 offen sc1", "pub")
                    a("s_mov_b64 exec, -1")
                if s == 35 and h == 6:
                    a(f"s_lshl_b32 s{sT2}, s{sJ}, 2\nv_mov_b32 v{AXB+3}, s{sT2}")
                    a.vm(kv_load(), "kvf")
                if s == 35 and h < 8:
                    for s2 in range(DIST):
                        a(pp_reads(K_F1, 36, 512, h + 1, s2))
        if h % 2 == 1:
            stamp(a, 16 + h // 2)
    if sb == 0:
        a(f"s_lshl_b32 s{sT2}, s{sPAN+8}, 5\nv_add_u32 v{VT+6}, s{sT2}, v{vHW}\ns_nop 7\ns_nop 1")
        a(gelu_ops(ACF))
        a(hw_ops(ACF, VT + 6, 0))
    a.wait_lds_all()


def ffn2_epi_ops(acc):
    ops = [f"v_cvt_pk_bf16_f32 v{acc+i}, v{acc+2*i}, v{acc+2*i+1}" for i in range(8)]
    ops += ["s_nop 0",
            f"v_permlane32_swap_b32 v{acc}, v{acc+2}",
            f"v_permlane32_swap_b32 v{acc+1}, v{acc+3}",
            f"v_permlane32_swap_b32 v{acc+4}, v{acc+6}",
            f"v_permlane32_swap_b32 v{acc+5}, v{acc+7}"]
    return ops


def part_store_ops(acc, h):
    return [f"s_lshl_b32 s{sT4}, s{sPAN+h}, 6",
            f"s_add_u32 s{sT4}, s{sT4}, s{sPB}",
            ("v", f"buffer_store_dwordx4 {vr(acc,4)}, v{vL16}, {sr(SWS,4)}, s{sT4} offen sc1", f"p{h}"),
            ("v", f"buffer_store_dwordx4 {vr(acc+4,4)}, v{vL16}, {sr(SWS,4)}, s{sT4} offen offset:1024 sc1", f"p{h}")]


NFA = 4


def ffn2(a, sb):
    def bfrag(s):
        return VB + 4 * s if s < 36 else VOB + 4 * (s - 36)

    ST = 196
    if sb == 0:
        for s in range(DIST):
            a(pp_reads(K_F2, 40, 1024, 0, s))
    for h in range(9):
        comp = (h % 2) == sb
        ops = []
        late = []
        if not comp and h > 0:
            ops = ffn2_epi_ops(ACF)
            st_ops = part_store_ops(ACF, h - 1)
            if any(dma_half(ahead(K_F2 + (40 * h + s) // 8), 0) for s in range(8, 40, 4)):
                late = st_ops
            else:
                ops += st_ops
        for s in range(40):
            i = 40 * h + s
            k = K_F2 + i // 8
            if i % 8 == 0 and k + 1 < K_END:
                if h == NFA + 2 and s == 0:
                    a.wait(vtag=f"p{NFA-1}")
                    a.wait(vtag=f"p{NFA-2}")
                if k == K_END - 2 and sb == 1:
                    u = a.uid()
                    rstamp(a, 1)
                    a(f"s_cbranch_vccz L_w{u}")
                    a(fl_load(0))
                    a("s_waitcnt vmcnt(0)")
                    poll_loop(a, fl_load(0), fl_ok())
                    a(f"L_w{u}:")
                    rstamp(a, 2)
                top(a, k, ltag=f"a{h}_{s}" if comp else None)
            if comp:
                a.wait_lds(f"a{h}_{s}")
                mfma(a, ACF, ABUF + 4 * (s % 4), bfrag(s), "0" if s == 0 else None)
                if s == 1:
                    a(f"s_lshl_b32 s{sT2}, s{sPAN+h}, 3\nv_add_u32 v{VT+6}, s{sT2}, v{vBA}")
                if s == 35:
                    a(a_read_ops(AXB, VT + 6, VT + 6, 0, 256, "ax"))
                if s + DIST < 40:
                    a(pp_reads(K_F2, 40, 1024, h, s + DIST))
                if s == 39:
                    a.wait_lds("ax")
                    mfma(a, ACF, AXB, VOB + 16)
            else:
                if s % 4 == 0:
                    d = dma_half(ahead(k), (i % 8) // 4)
                    a(d[:-1])
                    last = d[-1:]
                    if s == 0 and ops:
                        a("s_nop 7\ns_nop 3")
                if s % 4 == 2:
                    a(last)
                if s >= 2:
                    pop(a, ops, 3)
                if s == 38:
                    a(late)
                if s == 38 and h == 2:
                    a(f"""v_mov_b32 v{VF}, s{sNON}
                          v_mov_b32 v{VF+1}, s{sNON+1}
                          v_mov_b32 v{VF+2}, 0
                          v_mov_b32 v{VF+3}, 0
                          s_cmp_eq_u32 s{sW}, 1
                          s_cselect_b32 s{sT2}, 64, 0x1000
                          v_mov_b32 v{VF+6}, s{sT2}
                          s_mov_b64 exec, 1""")
                    a.vm(f"buffer_atomic_cmpswap_x2 {vr(VF,4)}, v{VF+6}, {sr(SDBG,4)}, 0 offen sc0 sc1", "non")
                    a("s_mov_b64 exec, -1")
                if s == 38 and h == NFA + 2:
                    a.wait(vtag="non")
                    a(f"""v_readfirstlane_b32 s{sT2}, v{VF}
                          v_readfirstlane_b32 s{sT3}, v{VF+1}
                          s_lshl_b32 s{sKVF}, s{sT}, 8
                          s_add_u32 s{sKVF}, s{sKVF}, {WS_FLAG}
                          s_cmp_eq_u64 {sr(sT2,2)}, 0
                          s_cselect_b64 {sr(sT2,2)}, {sr(sNON,2)}, {sr(sT2,2)}
                          v_mov_b32 v{VF}, s{sT2}
                          v_mov_b32 v{VF+1}, s{sT3}
                          v_and_b32 v{VF+6}, 7, v{vLANE}
                          v_lshlrev_b32 v{VF+6}, 3, v{VF+6}
                          s_lshl_b32 s{sT2}, s{sJ}, 3
                          s_cmp_eq_u32 s{sW}, 1
                          s_cselect_b32 s{sT2}, s{sT2}, 0x7ff00000
                          v_mov_b32 v{VF+7}, s{sT2}
                          s_mov_b64 exec, 1""")
                    a.vm(fl_store(0), "fa")
                    a("s_mov_b64 exec, -1")
                if s == 39 and h < 8:
                    for s2 in range(DIST):
                        a(pp_reads(K_F2, 40, 1024, h + 1, s2))
        if h % 2 == 1:
            stamp(a, 21 + h // 2)
        if h == 7:
            rstamp(a, 0)
    if sb == 0:
        a("s_nop 7\ns_nop 3")
        a(ffn2_epi_ops(ACF))
        a(part_store_ops(ACF, 8))


QKV_MASK2 = 0
for _l in range(64):
    _t, _pc = _l // 16, _l % 4
    if (_t == 0 and _pc < 2) or _t in (1, 2) or (_t == 3 and _pc == 0):
        QKV_MASK2 |= 1 << _l


def qkv_reads(s, second):
    if s >= 36:
        return []
    addr = slot_of(s // 2) + (s % 2) * 8192 + (1024 if second else 0)
    return a_read_ops((ABUF2 if second else ABUF) + 4 * (s % 4), vB0, vB1, addr, 2048, f"{'b' if second else 'a'}{s}")


def qkv_body(a, swapped):
    acc0, acc1 = ACC
    for s in range(36):
        k = s // 2
        c = "0" if s == 0 else None
        if s % 2 == 0:
            top(a, k, ltag=f"a{s}")
            d = dma_sym(ahead(k))
            d = (d[:-1], d[-1:])
        a.wait_lds(f"a{s}")
        mfma(a, acc0, ABUF + 4 * (s % 4), VB + 4 * s, c)
        a(qkv_reads(s + 2, False))
        if s % 2 == 1:
            a(d[1])
        a.wait_lds(f"b{s}")
        if swapped:
            mfma(a, acc1, VB + 4 * s, ABUF2 + 4 * (s % 4), c)
        else:
            mfma(a, acc1, ABUF2 + 4 * (s % 4), VB + 4 * s, c)
        a(qkv_reads(s + 2, True))
        if s % 2 == 0:
            a(d[0])


def granule_dest(G):
    if G >= 36:
        return None
    part, gg = divmod(G, 18)
    pair, r = divmod(gg, 9)
    if r == 4:
        return part, 4096 + pair * 8
    head, gm = (2 * pair, r) if r < 4 else (2 * pair + 1, r - 5)
    return part, head * 1024 + (gm >> 1) * 512 + (gm & 1) * 8


def qk_scatter(a, T, acc):
    for c in range(4):
        d0, d1 = granule_dest(8 * T + 2 * c), granule_dest(8 * T + 2 * c + 1)
        if d0 is None:
            continue
        assert d0[0] == d1[0]
        a(f"""v_cvt_pk_bf16_f32 v{acc+4*c}, v{acc+4*c}, v{acc+4*c+1}
              v_cvt_pk_bf16_f32 v{acc+4*c+1}, v{acc+4*c+2}, v{acc+4*c+3}""")
        if d0[0] == 1:
            lo = min(d0[1], d1[1])
            t = VT + c
            if d1[1] >= d0[1]:
                a(f"s_mov_b32 s{sT1}, {d1[1]-d0[1]}\nv_mad_u32_u24 v{t}, v{vHALF}, s{sT1}, v{vN16}")
            else:
                a(f"s_mov_b32 s{sT1}, {d0[1]-d1[1]}\nv_mad_u32_u24 v{t}, v{VT+7}, s{sT1}, v{vN16}")
            a(f"""s_add_u32 s{sT1}, s{sT5}, {lo}
                  buffer_store_dwordx2 {vr(acc+4*c,2)}, v{t}, {sr(SWS,4)}, s{sT1} offen sc1""")
        else:
            def ldsoff(o):
                return ("m", o) if o < 4096 else ("x", o - 4096)
            (k0, o0), (k1, o1) = ldsoff(d0[1]), ldsoff(d1[1])
            base = {"m": sSTG, "x": sT4}
            t = VT + c
            a(f"""s_add_u32 s{sT1}, s{base[k0]}, {o0}
                  s_add_u32 s{sT2}, s{base[k1]}, {o1}
                  s_sub_u32 s{sT2}, s{sT2}, s{sT1}
                  v_mul_lo_u32 v{t}, v{vHALF}, s{sT2}
                  v_add3_u32 v{t}, v{t}, v{vN16}, s{sT1}
                  ds_write_b64 v{t}, {vr(acc+4*c,2)}""")


def v_store(a, acc):
    t0, t1, t2 = VT, VT + 1, VT + 2
    for i in range(8):
        a(f"v_cvt_pk_bf16_f32 v{acc+i}, v{acc+2*i}, v{acc+2*i+1}")
    a(f"""s_sub_u32 s{sT1}, s{sQ}, 1
          s_lshl_b32 s{sT1}, s{sT1}, 5
          v_add_u32 v{t0}, s{sT1}, v{vN}
          v_mul_u32_u24 v{t1}, 57, v{t0}
          v_lshrrev_b32 v{t1}, 10, v{t1}
          v_mul_u32_u24 v{t2}, 54, v{t1}
          v_add_u32 v{t2}, v{t0}, v{t2}
          v_mad_u32_u24 v{t2}, v{vHALF}, 18, v{t2}
          v_lshlrev_b32 v{t2}, 4, v{t2}
          v_cmp_lt_u32 {sr(sM,2)}, 3, v{t1}
          v_mov_b32 v{t1}, 0x7fffff00
          s_add_u32 s{sT1}, s{sT5}, {WS_V - WS_K}
          v_cndmask_b32 v{t2}, v{t2}, v{t1}, {sr(sM,2)}
          buffer_store_dwordx4 {vr(acc,4)}, v{t2}, {sr(SWS,4)}, s{sT1} offen sc1
          buffer_store_dwordx4 {vr(acc+4,4)}, v{t2}, {sr(SWS,4)}, s{sT1} offen offset:576 sc1""")


def attention(a):
    S = lambda u: 16 + 16 * u
    KB = [212, 216, 220, 224]
    KF = (240, 244)
    VQ = [160, 164, 168, 172, 176, 180, 184, 188, 192, 196, 200, 204, 208,
          212, 216, 220, 224, 244]
    V = lambda u, x: VQ[2 * u + x]
    P = lambda u: S(u) if u != 1 else S(0) + 8
    OA = S(1)
    vKa, vKb, vKc, vXa, vXb, vXc = vB0, vB1, vHW, vBA, vC2, 238
    vM = VT + 1
    ONES = "0x3f803f80"
    NEGB = 0xff7f
    S4, S0, S2 = 4 * SLOT, 0, 2 * SLOT
    a(f"""s_mul_i32 s{sT2}, s{sG}, {TB}
          s_lshl_b32 s{sT3}, s{sQ}, 10
          s_add_u32 s{sT3}, s{sT3}, s{sT2}
          v_add_u32 v{vKb}, s{sT3}, v{vL16}
          v_add_u32 v{vKa}, {S4}, v{vKb}
          s_lshl_b32 s{sT3}, s{sQ}, 2
          s_add_u32 s{sT3}, s{sT3}, s{sT2}
          s_add_u32 s{sT3}, s{sT3}, 4096
          v_add_u32 v{vXb}, s{sT3}, v{vN16}
          v_add_u32 v{vXa}, {S4}, v{vXb}
          s_mov_b32 s{sT3}, {-TB & 0xffffffff}
          s_cmp_eq_u32 s{sG}, 0
          s_cselect_b32 s{sT3}, {S4 + 2*TB}, s{sT3}
          v_add_u32 v{vKc}, s{sT3}, v{vKb}
          v_add_u32 v{vXc}, s{sT3}, v{vXb}
          s_lshl_b32 s{sT5}, s{sT}, 1
          s_add_u32 s{sT5}, s{sT5}, s{sG}
          s_sub_u32 s{sT5}, s{sT5}, 8""")

    def kaddr(u):
        if u < 2:
            return vKa, vXa, u * TB
        if u == 2:
            return vKc, vXc, 0
        return vKb, vXb, (u - 3) * TB

    def kread(u):
        vk, vx, off = kaddr(u)
        a.lds(f"ds_read_b128 {vr(KB[u%4],4)}, v{vk} offset:{off}", f"k{u}")
        a.lds(f"ds_read_b32 v{VT+4+u%4}, v{vx} offset:{off}", f"k{u}")

    def qk(u):
        kf = KF[u % 2]
        a(f"""s_add_i32 s{sT0}, s{sT5}, {u}
              s_cmp_lt_i32 s{sT0}, 0
              s_cselect_b32 s{sT0}, {NEGB}, 0""")
        a.wait_lds(f"k{u}")
        a(f"v_mov_b32 v{kf}, v{VT+4+u%4}\nv_mov_b32 v{kf+1}, s{sT0}")
        mfma(a, S(u), KB[u % 4], VQ0, None if u in (0, 8) else "0")
        a("s_nop 0")
        mfma(a, S(u), kf, VQ1)

    setup = []
    for kf in KF:
        setup += [f"v_mov_b32 v{kf+2}, 0", f"v_mov_b32 v{kf+3}, 0"]
    setup += lines(f"""v_mov_b32 v{VQ1+2}, 0
          v_mov_b32 v{VQ1+3}, 0
          v_cmp_eq_u32 {sr(sM,2)}, 0, v{vHALF}
          v_mov_b32 v{vM}, 0x3f80
          v_lshlrev_b32 v{VT+2}, 2, v{vHALF}
          v_cndmask_b32 v{VQ1+1}, 0, v{vM}, {sr(sM,2)}
          v_cndmask_b32 v{VQ1}, 0, v{VQ1}, {sr(sM,2)}
          v_sub_u32 v{VT+2}, v{vN}, v{VT+2}
          v_mov_b32 v{VT+3}, {f32(-1e30)}""")
    for r in range(16):
        cr = 8 * (r // 4) + r % 4
        setup += lines(f"""v_cmp_le_i32 {sr(sM,2)}, {cr}, v{VT+2}
              s_nop 1
              v_cndmask_b32 v{S(8)+r}, v{VT+3}, 0, {sr(sM,2)}
              v_cndmask_b32 v{S(0)+r}, 0, v{VT+3}, {sr(sM,2)}""")
    a(setup)
    plan = [[0, 1, 2], [3, 4, 5, 6], [7, 8]]
    for st in range(3):
        top(a, K_K + st)
        for u in plan[st]:
            kread(u)
        a(dma_sym(ahead(K_K + st)))
        for u in plan[st]:
            qk(u)
    a(f"""s_mul_i32 s{sT2}, s{sG}, {TB}
          s_mul_i32 s{sT3}, s{sQ}, 1152
          s_add_u32 s{sT2}, s{sT2}, s{sT3}
          s_add_u32 s{sT2}, s{sT2}, {S2}
          v_mad_u32_u24 v{vKa}, v{vHALF}, 18, v{vN}
          v_lshl_add_u32 v{vKa}, v{vKa}, 4, s{sT2}
          v_cmp_gt_u32 {sr(sM,2)}, 18, v{vN}""")
    for qd in VQ:
        for r in range(4):
            a(f"v_mov_b32 v{qd+r}, {ONES}")
    vplan = [[0, 1, 2, 3], [4, 5, 6, 7], [8]]
    mx = []
    regs = list(range(S(0), S(8) + 16))
    mx.append(f"v_max3_f32 v{vM}, v{regs[0]}, v{regs[1]}, v{regs[2]}")
    mx.append(f"v_max3_f32 v{VT+2}, v{regs[3]}, v{regs[4]}, v{regs[5]}")
    regs = regs[6:]
    k = 0
    while regs:
        dd = vM if k % 2 == 0 else VT + 2
        mx.append(f"v_max3_f32 v{dd}, v{dd}, v{regs[0]}, v{regs[1]}")
        regs = regs[2:]
        k += 1
    for st in range(3):
        if st > 0:
            a.wait_lds_all()
        top(a, K_V + st)
        a(f"s_mov_b64 exec, {sr(sM,2)}")
        for u in vplan[st]:
            for x in range(2):
                a.lds(f"ds_read_b128 {vr(V(u,x),4)}, v{vKa} offset:{u*TB + x*576}", "v")
        a("s_mov_b64 exec, -1")
        a(dma_sym(ahead(K_V + st)))
        pop(a, mx, 24)
    a(mx)
    a(f"""v_max_f32 v{vM}, v{vM}, v{VT+2}
          v_mov_b32 v{VT+2}, v{vM}
          s_nop 1
          v_permlane32_swap_b32 v{vM}, v{VT+2}
          v_max_f32 v{vM}, v{vM}, v{VT+2}
          v_mul_f32 v{vM}, s{sC}, v{vM}""")
    a.wait_lds_all()
    stamp(a, 6)
    pend = []
    for u in range(9):
        for r in range(16):
            a(f"v_fma_f32 v{S(u)+r}, v{S(u)+r}, s{sC}, -v{vM}")
            if r in (3, 11) and pend:
                pend.pop(0)()
        for r in range(16):
            a(f"v_exp_f32 v{S(u)+r}, v{S(u)+r}")
            if r in (3, 11) and pend:
                pend.pop(0)()
        for r in range(8):
            a(f"v_cvt_pk_bf16_f32 v{P(u)+r}, v{S(u)+2*r}, v{S(u)+2*r+1}")
        if u >= 1:
            us = [0, 1] if u == 1 else [u]
            for uu in us:
                pend.append(lambda uu=uu: mfma(a, OA, V(uu, 0), P(uu), "0" if uu == 0 else None))
                pend.append(lambda uu=uu: mfma(a, OA, V(uu, 1), P(uu) + 4))
    a("s_nop 1")
    while pend:
        pend.pop(0)()
    a(f"""s_nop 15
          v_rcp_f32 v{vM}, v{OA+10}
          v_cmp_eq_u32 {sr(sM,2)}, 0, v{vHALF}""")
    for r in range(10):
        a(f"v_mul_f32 v{OA+r}, v{OA+r}, v{vM}")
    for r in range(5):
        a(f"v_cvt_pk_bf16_f32 v{VT+r}, v{OA+2*r}, v{OA+2*r+1}")
    a(f"v_cndmask_b32 v{VT+4}, 0, v{VT+4}, {sr(sM,2)}")


def final_reduce(a):
    vXO, vBO = vB0, vB1
    sets = {"A": (16, 20, 32, 96, sQB, sW1Q, sW1S), "B": (24, 28, 64, 112, sW2Q, sW2S, sWOQ)}

    def addr(sb, s_row, s_col, s_p):
        a(f"""s_bfe_u32 s{s_row}, s{sb}, 0x10001
              s_lshl_b32 s{sT0}, s{sT}, 1
              s_add_u32 s{s_row}, s{s_row}, s{sT0}
              s_mul_i32 s{s_row}, s{s_row}, {32*1152}
              s_lshr_b32 s{s_col}, s{sb}, 2
              s_lshl_b32 s{s_col}, s{s_col}, 6
              s_and_b32 s{sT0}, s{sb}, 1
              s_lshl_b32 s{sT0}, s{sT0}, 5
              s_add_u32 s{s_col}, s{s_col}, s{sT0}
              s_add_u32 s{s_row}, s{s_row}, s{s_col}
              s_mul_i32 s{sT0}, s{sT}, 73728
              s_lshl_b32 s{s_p}, s{sb}, 10
              s_add_u32 s{s_p}, s{s_p}, s{sT0}
              s_add_u32 s{s_p}, s{s_p}, {WS_PART}""")

    def xb_loads(w):
        X, Bq, PR, AC, s_row, s_col, s_p = sets[w]
        a(f"""buffer_load_dwordx4 {vr(X,4)}, v{vXO}, {sr(SX,4)}, s{s_row} offen
              buffer_load_dwordx4 {vr(Bq,4)}, v{vBO}, {sr(SB,4)}, s{s_col} offen""")

    def p_loads(w):
        X, Bq, PR, AC, s_row, s_col, s_p = sets[w]
        for jj in range(8):
            a(f"buffer_load_dwordx4 {vr(PR+4*jj,4)}, v{vL16}, {sr(SWS,4)}, s{s_p} offen sc1")
            if jj < 7:
                a(f"s_add_u32 s{s_p}, s{s_p}, {32*73728}")

    def unpack_add(dst, src, first):
        for r in range(4):
            if first:
                a(f"v_lshlrev_b32 v{dst+2*r}, 16, v{src+r}\nv_and_b32 v{dst+2*r+1}, 0xffff0000, v{src+r}")
            else:
                t = VT + 2 * (r % 2)
                a(f"""v_lshlrev_b32 v{t}, 16, v{src+r}
                      v_and_b32 v{t+1}, 0xffff0000, v{src+r}
                      v_pk_add_f32 {vr(dst+2*r,2)}, {vr(dst+2*r,2)}, {vr(t,2)}""")

    def finish(w, counted):
        X, Bq, PR, AC, s_row, s_col, s_p = sets[w]
        for jj in range(8):
            if counted:
                a(f"s_waitcnt vmcnt({7-jj})")
            unpack_add(AC, PR + 4 * jj, False)
        for r in range(4):
            a(f"v_cvt_pk_bf16_f32 v{X+r}, v{AC+2*r}, v{AC+2*r+1}")
        a(f"buffer_store_dwordx4 {vr(X,4)}, v{vXO}, {sr(SOUT,4)}, s{s_row} offen")

    a(f"""v_mul_u32_u24 v{vXO}, 1152, v{vN}
          v_lshl_add_u32 v{vXO}, v{vHALF}, 4, v{vXO}
          v_lshlrev_b32 v{vBO}, 4, v{vHALF}
          s_add_u32 s{sW}, s{sW}, 6
          s_and_b32 s{sW}, s{sW}, 7
          s_mov_b32 s{sT2}, s{sW}
          s_cmp_lt_u32 s{sT2}, {NFA}
          s_cbranch_scc0 L_fr_noA
          s_lshr_b32 s{sT1}, s{sPAN}, 7
          s_add_u32 s{sT2}, s{sT2}, s{sT1}
          s_sub_u32 s{sT1}, s{sT2}, 9
          s_cmp_ge_u32 s{sT2}, 9
          s_cselect_b32 s{sT2}, s{sT1}, s{sT2}
          s_lshl_b32 s{sT2}, s{sT2}, 3
          s_add_u32 s{sT2}, s{sT2}, s{sJ}""")
    addr(sT2, *sets["A"][4:])
    p_loads("A")
    xb_loads("A")
    a(f"""L_fr_noA:
          s_sub_u32 s{sT2}, s{sW}, 2
          s_cmp_lt_u32 s{sT2}, 5
          s_cselect_b32 s{sSB}, 1, 0
          s_cbranch_scc0 L_fr_noB
          s_add_u32 s{sT2}, s{sW}, 2
          s_lshr_b32 s{sT1}, s{sPAN}, 7
          s_add_u32 s{sT2}, s{sT2}, s{sT1}
          s_sub_u32 s{sT1}, s{sT2}, 9
          s_cmp_ge_u32 s{sT2}, 9
          s_cselect_b32 s{sT2}, s{sT1}, s{sT2}
          s_lshl_b32 s{sT2}, s{sT2}, 3
          s_add_u32 s{sT2}, s{sT2}, s{sJ}""")
    addr(sT2, *sets["B"][4:])
    xb_loads("B")
    a("L_fr_noB:")
    rstamp(a, 3)
    a("s_waitcnt vmcnt(0)\ns_barrier")
    rstamp(a, 4)
    a("s_cbranch_vccz L_fr_w\ns_mov_b64 exec, 1")
    a(fl_store(1))
    a("s_mov_b64 exec, -1")
    a(fl_load(1))
    a("s_waitcnt vmcnt(0)")
    poll_loop(a, fl_load(1), fl_ok())
    a(f"""s_branch L_fr_join
          L_fr_w:
          s_cmp_ge_u32 s{sW}, {NFA}
          s_cbranch_scc1 L_fr_A_done""")
    X, Bq, PR, AC = sets["A"][:4]
    unpack_add(AC, X, True)
    unpack_add(AC, Bq, False)
    finish("A", False)
    a(f"""L_fr_A_done:
          s_cmp_eq_u32 s{sSB}, 0
          s_cbranch_scc1 L_fr_join""")
    X, Bq, PR, AC = sets["B"][:4]
    unpack_add(AC, X, True)
    unpack_add(AC, Bq, False)
    a("L_fr_join:\ns_barrier")
    rstamp(a, 5)
    stamp(a, 9)
    a(f"s_cmp_eq_u32 s{sSB}, 0\ns_cbranch_scc1 L_fr_end")
    p_loads("B")
    finish("B", True)
    a(f"L_fr_end:\ns_add_u32 s{sW}, s{sW}, 2\ns_and_b32 s{sW}, s{sW}, 7")


def main_kernel(a):
    a("s_cmp_ge_u32 s2, 256\ns_cbranch_scc1 L_main_end")
    stamp(a, 0)
    a(f"""s_load_dwordx16 {sr(4,16)}, s[0:1], 0
          s_load_dwordx4 {sr(20,4)}, s[0:1], 64
          s_load_dwordx2 {sr(24,2)}, s[0:1], 80
          s_memrealtime {sr(sNON,2)}
          v_and_b32 v{vLANE}, 63, v0
          v_lshrrev_b32 v{VT}, 6, v0
          v_and_b32 v{vN}, 31, v0
          v_readfirstlane_b32 s{sW}, v{VT}
          v_bfe_u32 v{vHALF}, v0, 5, 1
          v_lshlrev_b32 v{vL16}, 4, v{vLANE}
          v_lshlrev_b32 v{vN16}, 4, v{vN}
          s_and_b32 s{sJ}, s2, 3
          s_lshl_b32 s{sJ}, s{sJ}, 1
          s_bfe_u32 s{sT1}, s2, 0x10003
          s_add_u32 s{sJ}, s{sJ}, s{sT1}
          s_lshr_b32 s{sT}, s2, 4
          s_bfe_u32 s{sT1}, s2, 0x10002
          s_lshl_b32 s{sT1}, s{sT1}, 4
          s_add_u32 s{sT}, s{sT}, s{sT1}
          s_and_b32 s{sQ}, s{sW}, 3
          s_lshr_b32 s{sG}, s{sW}, 2
          v_lshrrev_b32 v{VT}, 3, v{vLANE}
          v_mul_u32_u24 v{VT}, 1152, v{VT}
          v_and_b32 v{VT+1}, 7, v{vLANE}
          v_lshl_add_u32 v{VT}, v{VT+1}, 4, v{VT}
          s_lshl_b32 s{sT1}, s{sT}, 3
          s_add_u32 s{sT1}, s{sT1}, s{sW}
          s_mul_i32 s{sT1}, s{sT1}, {8*1152}
          s_waitcnt lgkmcnt(0)""")
    srd(a, SX, P_X, 2048 * 576 * 2)
    XR, XF = 16, 64
    for i in range(9):
        a.vm(f"buffer_load_dwordx4 {vr(XR+4*i,4)}, v{VT}, {sr(SX,4)}, s{sT1} offen offset:{128*i}", "x")
    if STAMPS:
        a(f"v_writelane_b32 v{VT+6}, s{sNON}, 0")
    a(f"s_or_b32 s{sNON}, s{sNON}, 1")
    srd(a, SB1, P_B1, 4608 * 2)
    a(f"""v_lshlrev_b32 v{VT+2}, 2, v0
          s_mul_i32 s{sT1}, s{sJ}, 1152""")
    a.vm(f"buffer_load_dword v{VT+3}, v{VT+2}, {sr(SB1,4)}, s{sT1} offen", "x")
    srd(a, SQKV, P_WQKV, 576 * 1728 * 2)
    srd(a, SWO, P_WO, 576 * 576 * 2)
    srd(a, SW1, P_W1, 576 * 4608 * 2)
    srd(a, SW2, P_W2, 4608 * 576 * 2)
    srd(a, SWS, P_WS, WS_BYTES)
    srd(a, SOUT, P_OUT, 2048 * 576 * 2)
    srd(a, SB, P_B2, 576 * 2)
    a(f"""s_mul_i32 s{sT1}, s{sJ}, {64*TB}
          s_add_u32 s{SKV}, s{P_WS}, s{sT1}
          s_addc_u32 s{SKV+1}, s{P_WS+1}, 0
          s_and_b32 s{SKV+1}, s{SKV+1}, 0xffff
          s_mov_b32 s{SKV+2}, {8 << 20}
          s_mov_b32 s{SKV+3}, 0x20000
          v_bfe_u32 v{VT}, v{vLANE}, 2, 2
          v_lshlrev_b32 v{vINB}, 6, v{VT}
          v_bfe_u32 v{VT+1}, v{vLANE}, 4, 1
          v_lshl_add_u32 v{vINB}, v{VT+1}, 5, v{vINB}
          v_and_b32 v{VT+4}, 3, v{vLANE}
          v_lshl_add_u32 v{vINB}, v{VT+4}, 3, v{vINB}
          v_mul_u32_u24 v{VT}, 3456, v{VT}
          v_lshrrev_b32 v{VT+1}, 4, v{vLANE}
          v_lshl_add_u32 v{VT+1}, v{VT+1}, 2, v{VT+4}
          v_lshl_add_u32 v{VT}, v{VT+1}, 4, v{VT}
          v_cmp_lt_u32 vcc, 8, v{VT+1}
          v_mov_b32 v{VT+4}, {1152-144}
          v_mov_b32 v{VT+5}, {2304-64-1024}
          v_cndmask_b32 v{VT+4}, 0, v{VT+4}, vcc
          v_add_u32 v{vDV}, v{VT}, v{VT+4}
          v_cmp_lt_u32 vcc, 3, v{VT+1}
          v_mov_b32 v{VT+4}, {1152+112-1024}
          s_mov_b32 s{sVOFF}, {WS_V - WS_K}
          v_cndmask_b32 v{VT+4}, v{VT+4}, v{VT+5}, vcc
          v_add_u32 v{vDVb}, v{VT}, v{VT+4}
          s_mov_b32 vcc_lo, {QKV_MASK2 & 0xffffffff}
          s_mov_b32 vcc_hi, {QKV_MASK2 >> 32}
          v_mov_b32 v{VT+4}, 0x40000000
          v_cndmask_b32 v{vDVb}, v{VT+4}, v{vDVb}, vcc
          s_and_b32 s{sSB}, s{sQ}, 1
          s_xor_b32 s{sSB}, s{sSB}, s{sG}
          s_lshl_b32 s{sT2}, s{sSB}, 2
          s_add_u32 s{sT2}, s{sT2}, s{sQ}
          s_lshl_b32 s{sW2K}, s{sT2}, 11
          s_lshl_b32 s{sQ2K}, s{sQ}, 11
          s_mul_i32 s{sHB}, s{sG}, {HG}
          s_add_u32 s{sHB}, s{sHB}, {HOFF}
          s_mul_i32 s{sQB}, s{sT2}, {4*3456}
          s_mul_i32 s{sT1}, s{sJ}, 144
          s_add_u32 s{sQB}, s{sQB}, s{sT1}
          s_barrier""")
    for k in range(PD1):
        a(dma_sym(k))
    a(f"""s_and_b32 s{sRK}, s{sT}, 15
          s_mul_i32 s{sT1}, s{sT}, 57
          s_lshr_b32 s{sT1}, s{sT1}, 9
          s_mul_i32 s{sT1}, s{sT1}, 9
          s_sub_u32 s{sT1}, s{sT}, s{sT1}
          s_lshl_b32 s{sPAN}, s{sT1}, 7""")
    for h in range(1, 9):
        a(f"""s_add_u32 s{sPAN+h}, s{sPAN+h-1}, 128
              s_cmp_eq_u32 s{sPAN+h}, 1152
              s_cselect_b32 s{sPAN+h}, 0, s{sPAN+h}""")
    a(f"""s_lshl_b32 s{sSTG}, s{sPAN+8}, 5
          s_add_u32 s{sSTG}, s{sSTG}, s{sHB}
          s_mul_i32 s{sT2}, s{sQ}, {16*9216}
          s_mul_i32 s{sT1}, s{sJ}, 1152
          s_add_u32 s{sW1Q}, s{sT2}, s{sT1}
          s_mul_i32 s{sT2}, s{sSB}, {64*9216}
          s_add_u32 s{sW1S}, s{sW1Q}, s{sT2}
          s_mul_i32 s{sT2}, s{sQ}, {16*1152}
          s_mul_i32 s{sT1}, s{sJ}, {576*1152}
          s_add_u32 s{sW2Q}, s{sT2}, s{sT1}
          s_mul_i32 s{sT2}, s{sSB}, {64*1152}
          s_add_u32 s{sW2S}, s{sW2Q}, s{sT2}
          s_mul_i32 s{sT2}, s{sJ}, 72
          s_mul_i32 s{sT1}, s{sQ}, 18
          s_add_u32 s{sT1}, s{sT1}, s{sT2}
          s_mul_i32 s{sWOQ}, s{sT1}, 1152
          s_add_u32 s{sT2}, s{sW2Q}, {512*1152}
          s_cmp_lg_u32 s{sSB}, 0
          s_cselect_b32 s{sH4}, s{sWOQ}, s{sT2}
          s_cselect_b64 {sr(SD,2)}, {sr(SWO,2)}, {sr(SW2,2)}
          s_cselect_b32 s{SD+2}, s{SWO+2}, s{SW2+2}
          s_mov_b32 s{SD+3}, 0x20000
          s_lshl_b32 s{sT1}, s{sJ}, 5
          s_add_u32 s{sT1}, s{sT1}, s{sT}
          s_mul_i32 s{sPB}, s{sT1}, 73728
          s_lshl_b32 s{sT1}, s{sG}, 11
          s_add_u32 s{sPB}, s{sPB}, s{sT1}
          s_lshr_b32 s{sT1}, s{sQ}, 1
          s_lshl_b32 s{sT1}, s{sT1}, 12
          s_add_u32 s{sPB}, s{sPB}, s{sT1}
          s_add_u32 s{sPB}, s{sPB}, {WS_PART}
          s_lshl_b32 s{sT2}, s{sT}, 1
          s_sub_u32 s{sT2}, s{sT2}, 8
          s_mul_i32 s{sT2}, s{sT2}, {TB}
          s_add_u32 s{sT2}, s{sT2}, s{sQ2K}
          v_add_u32 v{vKV}, s{sT2}, v{vL16}
          s_mov_b32 s{sC}, {f32(18 ** -0.5 * 1.4426950408889634)}
          v_mov_b32 v{vC2}, {f32(-2.0 * 1.4426950408889634 * 0.7978845608028654 * 0.044715)}""")
    PF = AXB
    a(f"""s_mul_i32 s{sT1}, s{sW}, 27
          v_add_u32 v{VT}, s{sT1}, v{vLANE}
          v_mul_u32_u24 v{VT+1}, 171, v{VT}
          v_lshrrev_b32 v{VT+1}, 10, v{VT+1}
          v_mul_u32_u24 v{VT+4}, 6, v{VT+1}
          v_sub_u32 v{VT+4}, v{VT}, v{VT+4}
          v_mul_u32_u24 v{VT+1}, 3456, v{VT+1}
          v_lshrrev_b32 v{VT+5}, 1, v{VT+4}
          v_mul_u32_u24 v{VT+5}, 1152, v{VT+5}
          v_and_b32 v{VT+4}, 1, v{VT+4}
          v_mul_u32_u24 v{VT+4}, 140, v{VT+4}
          v_add3_u32 v{VT+1}, v{VT+1}, v{VT+4}, v{VT+5}
          s_mul_i32 s{sT1}, s{sRK}, {36*3456}
          s_mul_i32 s{sT2}, s{sJ}, 144
          s_add_u32 s{sT1}, s{sT1}, s{sT2}
          s_mov_b64 exec, 0x7ffffff""")
    a.vm(f"buffer_load_dword v{PF}, v{VT+1}, {sr(SQKV,4)}, s{sT1} offen", "pf")
    a(f"""s_mov_b64 exec, -1
          s_mul_i32 s{sT1}, s{sW}, 41
          v_add_u32 v{VT}, s{sT1}, v{vLANE}
          v_mul_u32_u24 v{VT+1}, 911, v{VT}
          v_lshrrev_b32 v{VT+1}, 13, v{VT+1}
          v_mul_u32_u24 v{VT+1}, {9216 - 1152}, v{VT+1}
          v_lshl_add_u32 v{VT+1}, v{VT}, 7, v{VT+1}
          s_mul_i32 s{sT1}, s{sRK}, {36*9216}
          s_mul_i32 s{sT2}, s{sJ}, 1152
          s_add_u32 s{sT1}, s{sT1}, s{sT2}""")
    a.wait(vtag="x")
    a("s_mov_b32 exec_hi, 0x1ff")
    a.vm(f"buffer_load_dword v{PF+1}, v{VT+1}, {sr(SW1,4)}, s{sT1} offen", "pf")
    a(f"""s_mov_b64 exec, -1
          v_lshlrev_b32 v{VT+4}, 16, v{VT+3}
          v_and_b32 v{VT+5}, 0xffff0000, v{VT+3}
          v_lshlrev_b32 v{VT+2}, 3, v0
          v_add_u32 v{VT+2}, {BOFF}, v{VT+2}
          v_cmp_gt_u32 vcc, 288, v0
          s_and_saveexec_b64 {sr(sT2,2)}, vcc
          ds_write_b64 v{VT+2}, {vr(VT+4,2)}
          s_mov_b64 exec, -1""")
    if STAMPS:
        a(f"v_readlane_b32 s{sT2}, v{VT+6}, 0\ns_nop 3\nv_writelane_b32 v0, s{sT2}, 30")
    stamp(a, 1)
    for i in range(36):
        a(f"v_lshlrev_b32 v{XF+2*i}, 16, v{XR+i}\nv_and_b32 v{XF+2*i+1}, 0xffff0000, v{XR+i}")
    A0, A1 = VT, VT + 2

    def rowsum(dst):
        a(f"""v_pk_add_f32 {vr(A0,2)}, {vr(A0,2)}, {vr(A1,2)}
              v_add_f32 v{dst}, v{A0}, v{A0+1}
              s_nop 1
              v_add_f32_dpp v{dst}, v{dst}, v{dst} quad_perm:[1,0,3,2] row_mask:0xf bank_mask:0xf
              s_nop 1
              v_add_f32_dpp v{dst}, v{dst}, v{dst} quad_perm:[2,3,0,1] row_mask:0xf bank_mask:0xf
              s_nop 1
              v_add_f32_dpp v{dst}, v{dst}, v{dst} row_half_mirror row_mask:0xf bank_mask:0xf""")

    Q0_, Q1_ = XR, XR + 2
    a(f"v_pk_add_f32 {vr(A0,2)}, {vr(XF,2)}, {vr(XF+2,2)}\nv_pk_add_f32 {vr(A1,2)}, {vr(XF+4,2)}, {vr(XF+6,2)}")
    a(f"v_pk_mul_f32 {vr(Q0_,2)}, {vr(XF,2)}, {vr(XF,2)}\nv_pk_mul_f32 {vr(Q1_,2)}, {vr(XF+2,2)}, {vr(XF+2,2)}")
    for i in range(2, 36):
        if i >= 4:
            d = A0 if i % 2 == 0 else A1
            a(f"v_pk_add_f32 {vr(d,2)}, {vr(d,2)}, {vr(XF+2*i,2)}")
        d = Q0_ if i % 2 == 0 else Q1_
        a(f"v_pk_fma_f32 {vr(d,2)}, {vr(XF+2*i,2)}, {vr(XF+2*i,2)}, {vr(d,2)}")
    MEAN, VAR = VT + 4, VT + 6
    rowsum(MEAN)
    a(f"v_mov_b32 v{A0}, v{Q0_}\nv_mov_b32 v{A0+1}, v{Q0_+1}\nv_mov_b32 v{A1}, v{Q1_}\nv_mov_b32 v{A1+1}, v{Q1_+1}")
    rowsum(VAR)
    a(f"""v_mul_f32 v{MEAN}, {f32(1.0/576)}, v{MEAN}
          v_mul_f32 v{VAR}, {f32(1.0/576)}, v{VAR}
          v_fma_f32 v{VAR}, -v{MEAN}, v{MEAN}, v{VAR}
          v_max_f32 v{VAR}, 0, v{VAR}
          v_cvt_pk_bf16_f32 v{MEAN}, v{MEAN}, v{MEAN}
          v_lshlrev_b32 v{MEAN}, 16, v{MEAN}
          v_cvt_pk_bf16_f32 v{VAR}, v{VAR}, v{VAR}
          v_lshlrev_b32 v{VAR}, 16, v{VAR}
          v_add_f32 v{VAR}, {f32(1e-5)}, v{VAR}
          v_cvt_pk_bf16_f32 v{VAR}, v{VAR}, v{VAR}
          v_lshlrev_b32 v{VAR}, 16, v{VAR}
          v_sqrt_f32 v{VAR}, v{VAR}
          s_nop 0
          v_cvt_pk_bf16_f32 v{VAR}, v{VAR}, v{VAR}
          v_lshlrev_b32 v{VAR}, 16, v{VAR}
          v_rcp_f32 v{VAR}, v{VAR}
          v_sub_f32 v{MEAN}, 0, v{MEAN}
          v_mov_b32 v{VAR+1}, v{VAR}
          v_mov_b32 v{MEAN+1}, v{MEAN}""")
    for i in range(36):
        a(f"v_pk_add_f32 {vr(XF+2*i,2)}, {vr(XF+2*i,2)}, {vr(MEAN,2)}")
    if "nodround" not in ABL:
        for i in range(36):
            a(f"v_cvt_pk_bf16_f32 v{XR+i}, v{XF+2*i}, v{XF+2*i+1}")
        for i in range(36):
            a(f"v_lshlrev_b32 v{XF+2*i}, 16, v{XR+i}\nv_and_b32 v{XF+2*i+1}, 0xffff0000, v{XR+i}")
    for i in range(36):
        a(f"v_pk_mul_f32 {vr(XF+2*i,2)}, {vr(XF+2*i,2)}, {vr(VAR,2)}")
    a(f"""v_and_b32 v{A0}, 7, v{vLANE}
          v_lshrrev_b32 v{A0+1}, 3, v{vLANE}
          v_xor_b32 v{A0+1}, v{A0+1}, v{A0}
          v_lshlrev_b32 v{A0}, 9, v{A0}
          v_lshl_add_u32 v{A0}, v{A0+1}, 4, v{A0}
          s_lshl_b32 s{sT2}, s{sQ}, 7
          s_add_u32 s{sT2}, s{sT2}, s{sHB}
          v_add_u32 v{A0}, s{sT2}, v{A0}""")
    for i in range(9):
        for r in range(4):
            a(f"v_cvt_pk_bf16_f32 v{XR+4*i+r}, v{XF+8*i+2*r}, v{XF+8*i+2*r+1}")
        a(f"ds_write_b128 v{A0}, {vr(XR+4*i,4)} offset:{4096*i}")
    for m in range(4):
        a(f"""v_add_u32 v{VT+4+m}, {2*m}, v{vHALF}
              v_xor_b32 v{VT+4+m}, v{VT+4+m}, v{vN}
              v_lshlrev_b32 v{VT+4+m}, 4, v{VT+4+m}
              v_lshl_add_u32 v{VT+4+m}, v{vHALF}, 9, v{VT+4+m}
              v_add_u32 v{VT+4+m}, s{sHB}, v{VT+4+m}""")
    a(f"""v_lshl_add_u32 v{vB0}, v{vHALF}, 12, v{vINB}
          s_lshl_b32 s{sT1}, s{sQ}, 8
          v_add_u32 v{vB0}, s{sT1}, v{vB0}
          v_add_u32 v{vB1}, 0x10000, v{vB0}
          s_cmp_eq_u32 s{sW}, 1
          s_cselect_b64 vcc, -1, 0
          s_waitcnt lgkmcnt(0)""")
    srd(a, SDBG, P_DBG, 256)
    top(a, -1)
    for s in range(2):
        a.lds(f"ds_read_b128 {vr(VB+4*s,4)}, v{VT+4+s%4} offset:{1024*s}", "x")
    for s in range(2):
        a(qkv_reads(s, False))
        a(qkv_reads(s, True))
    for s in range(2, 36):
        a.lds(f"ds_read_b128 {vr(VB+4*s,4)}, v{VT+4+s%4} offset:{1024*s}", "x")
    a.wait_lds_all()
    stamp(a, 2)
    rstamp(a, 8)
    a(f"s_cmp_eq_u32 s{sQ}, 0\ns_cbranch_scc0 L_qkv_sw")
    st0 = a.snap()
    qkv_body(a, False)
    a("s_branch L_qkv_done\nL_qkv_sw:")
    a.restore(st0)
    qkv_body(a, True)
    a("L_qkv_done:")
    assert not a.lq
    stamp(a, 3)
    rstamp(a, 7)
    a(f"""v_lshl_add_u32 v{vB0}, v{vHALF}, 10, v{vINB}
          s_lshr_b32 s{sT2}, s{sQ}, 1
          s_lshl_b32 s{sT1}, s{sT2}, 8
          v_add_u32 v{vB0}, s{sT1}, v{vB0}
          v_add_u32 v{vB1}, 0x10000, v{vB0}
          s_lshl_b32 s{sT1}, s{sT2}, 7
          s_add_u32 s{sT1}, s{sT1}, {BOFF}
          v_lshl_add_u32 v{vBA}, v{vHALF}, 4, s{sT1}
          s_lshl_b32 s{sT1}, s{sT2}, 11
          s_add_u32 s{sT1}, s{sT1}, s{sHB}
          v_add_u32 v{vHW}, s{sT1}, v{vL16}
          s_cmp_lg_u32 s{sSB}, 0
          s_cbranch_scc1 L_f1_B""")
    st0 = a.snap()
    ffn1(a, 0)
    a("s_branch L_f1_done\nL_f1_B:")
    a.restore(st0)
    ffn1(a, 1)
    a("L_f1_done:")
    stamp(a, 5)
    rstamp(a, 6)
    attention(a)
    stamp(a, 7)
    a(f"""s_barrier
          v_add_u32 v{vHW}, s{sHB}, v{vL16}""")
    for s in range(36):
        a(f"ds_read_b128 {vr(VB+4*s,4)}, v{vHW} offset:{1024*s}")
    a(f"""v_bfe_u32 v{vBA}, v{vLANE}, 2, 3
          v_lshrrev_b32 v{vC2}, 1, v{vBA}
          v_mul_u32_u24 v{vC2}, 18, v{vC2}
          v_and_b32 v{vBA}, 1, v{vBA}
          v_add3_u32 v{vC2}, v{vC2}, v{vBA}, 16
          v_mul_u32_u24 v{vC2}, 1152, v{vC2}
          v_lshl_add_u32 v{vC2}, v{vHALF}, 6, v{vC2}
          v_and_b32 v{vBA}, 3, v{vLANE}
          v_lshl_add_u32 v{vC2}, v{vBA}, 4, v{vC2}
          s_mul_i32 s{sT1}, s{sG}, 5120
          s_add_u32 s{sT1}, s{sT1}, {OF}
          v_add_u32 v{vHW}, s{sT1}, v{vL16}
          s_lshl_b32 s{sT2}, s{sQ}, 10
          v_add_u32 v{vBA}, s{sT2}, v{vHW}
          s_lshl_b32 s{sT2}, s{sQ}, 2
          v_add_u32 v{vXA}, s{sT2}, v{vHW}
          v_lshl_add_u32 v{vB0}, v{vHALF}, 9, v{vINB}
          s_lshr_b32 s{sT2}, s{sQ}, 1
          s_lshl_b32 s{sT2}, s{sT2}, 8
          v_add_u32 v{vB0}, s{sT2}, v{vB0}
          v_add_u32 v{vB1}, 0x10000, v{vB0}
          s_waitcnt lgkmcnt(0)
          s_barrier
          ds_write_b128 v{vBA}, {vr(VT,4)}
          ds_write_b32 v{vXA}, v{VT+4} offset:4096
          s_mul_i32 s{sT1}, s{sJ}, {72*1152}
          s_lshl_b32 s{sT2}, s{sW}, 7
          s_add_u32 s{sT2}, s{sT2}, s{sT1}
          s_lshl_b32 s{sT3}, s{sW}, 10
          s_add_u32 m0, s{sT3}, {XB}
          s_add_u32 s{sT1}, s{sT1}, 1024""")
    a.vm(f"buffer_load_dwordx4 v{vC2}, {sr(SWO,4)}, s{sT2} offen lds", "xb")
    a(f"s_mov_b32 m0, {XB + 8192}")
    w0_only(a, f"buffer_load_dwordx4 v{vC2}, {sr(SWO,4)}, s{sT1} offen lds")
    for k in range(K_F2 + PD1, K_F2 + PD2):
        a(dma_sym(k))
    a(f"""s_lshr_b32 s{sT2}, s{sQ}, 1
          s_lshl_b32 s{sT2}, s{sT2}, 9
          s_add_u32 s{sT2}, s{sT2}, {XB}
          v_add_u32 v{vBA}, s{sT2}, v{vINB}
          s_waitcnt lgkmcnt(0)
          s_barrier""")
    for k in range(5):
        a.lds(f"ds_read_b128 {vr(VOB+4*k,4)}, v{vHW} offset:{1024*k}", "ob")
    a.wait_lds_all()
    stamp(a, 8)
    a(f"s_cmp_lg_u32 s{sSB}, 0\ns_cbranch_scc1 L_f2_B")
    st0 = a.snap()
    ffn2(a, 0)
    a("s_branch L_f2_done\nL_f2_B:")
    a.restore(st0)
    ffn2(a, 1)
    a("L_f2_done:")
    stamp(a, 25)
    final_reduce(a)
    if STAMPS:
        a("s_waitcnt vmcnt(0)")
    stamp(a, 10)
    stamp_flush(a)
    a("L_main_end:\ns_endpgm")


def build():
    out = ["; Fused LayerNorm + (sliding-window attention || GELU FFN) + residual; generated by gen/gen5.py",
           f"; @launch grid=(256,1,1) block=(512,1,1) lds={LDS_BYTES}",
           '.amdgcn_target "amdgcn-amd-amdhsa--gfx950"\n.text']
    a = Asm()
    a(f".globl {NAME}_kernel\n.p2align 8\n.type {NAME}_kernel,@function\n{NAME}_kernel:")
    main_kernel(a)
    out += a.L
    out.append(f""".section .rodata,"a"
.p2align 6
.amdhsa_kernel {NAME}_kernel
  .amdhsa_next_free_vgpr 256
  .amdhsa_next_free_sgpr 102
  .amdhsa_accum_offset 256
  .amdhsa_group_segment_fixed_size 0
  .amdhsa_kernarg_size 88
  .amdhsa_user_sgpr_count 2
  .amdhsa_user_sgpr_kernarg_segment_ptr 1
  .amdhsa_system_sgpr_workgroup_id_x 1
.end_amdhsa_kernel""")
    return "\n".join(out) + "\n"


if __name__ == "__main__":
    STAMPS = "--stamps" in sys.argv
    ABL = set(x[6:] for x in sys.argv if x.startswith("--abl="))
    args = [x for x in sys.argv[1:] if not x.startswith("--")]
    path = args[0] if args else f"cdna_kernels/{NAME}.s"
    open(path, "w").write(build())
    print("wrote", path)
```

```python
import struct
import sys

NAME = "parallel_sum__sliding_block__dense_activation_gelu__prompt"
STAMPS = False
ABL = set()


def f32(x):
    return "0x%08x" % struct.unpack("<I", struct.pack("<f", x))[0]


def lines(txt):
    return [x.strip() for x in txt.strip("\n").split("\n") if x.strip()]


class Asm:
    def __init__(self):
        self.L = []
        self.lq = []
        self.vq = []
        self.n = 0

    def __call__(self, txt):
        if isinstance(txt, list):
            for t in txt:
                self(t)
            return
        if isinstance(txt, tuple):
            (self.lds if txt[0] == "l" else self.vm)(txt[1], txt[2])
            return
        self.L += lines(txt)

    def lds(self, txt, tag):
        self(txt)
        self.lq.append(tag)

    def vm(self, txt, tag):
        self(txt)
        self.vq.append(tag)

    @staticmethod
    def _need(q, tag):
        if tag not in q:
            return None, q
        idx = max(i for i, t in enumerate(q) if t == tag)
        return len(q) - 1 - idx, q[idx + 1:]

    def wait(self, ltag=None, vtag=None):
        parts = []
        if vtag is not None:
            n, self.vq = self._need(self.vq, vtag)
            if n is not None:
                parts.append(f"vmcnt({min(n, 63)})")
        if ltag is not None:
            n, self.lq = self._need(self.lq, ltag)
            if n is not None:
                parts.append(f"lgkmcnt({min(n, 15)})")
        if parts:
            self("s_waitcnt " + " ".join(parts))

    def wait_lds(self, tag):
        self.wait(ltag=tag)

    def wait_lds_all(self):
        self("s_waitcnt lgkmcnt(0)")
        self.lq = []

    def wait_vm_all(self):
        self("s_waitcnt vmcnt(0)")
        self.vq = []

    def uid(self):
        self.n += 1
        return self.n

    def snap(self):
        return list(self.lq), list(self.vq)

    def restore(self, st):
        self.lq, self.vq = list(st[0]), list(st[1])


SLOT = 16384
HOFF = 5 * SLOT
HG = 36864
BOFF = HOFF + 2 * HG
XB = 8 * SLOT
OF = XB + 9216
QOFF = 32 * 1024
QXOFF = BOFF + 2304
NOFF = QXOFF + 1024
LDS_BYTES = NOFF + 64

TB = 4608
WS_K = 0
WS_V = 4 << 20
WS_FLAG = 8 << 20
WS_KVF = 9 << 20
WS_PART = 16 << 20
WS_BYTES = 268435456

P_X, P_WQKV, P_WO, P_W1, P_B1, P_W2, P_B2 = 4, 6, 8, 12, 14, 16, 18
P_OUT, P_DBG, P_WS = 20, 22, 24
sPAN = 4
SX, SQKV, SW1, SKV, SB1, SWO, SW2, SWS, SD, SOUT, SB = 28, 32, 36, 40, 44, 48, 52, 56, 60, 64, 16
SDBG = 44
sW, sQ, sG, sJ, sT = 68, 69, 70, 71, 72
sQB, sW1Q, sW1S, sW2Q, sW2S, sWOQ, sH4 = 73, 74, 75, 76, 77, 78, 79
sT0, sT1, sT2, sT3, sT4, sT5 = 80, 81, 82, 83, 84, 85
sPB, sSB, sC, sW2K, sHB, sDO, sKVF, sVOFF = 86, 87, 88, 89, 90, 91, 92, 93
sQ2K, sMINE, sSTG, sRK = 13, 14, 20, 21
sM = 26
sNON = 96
sST = 100

vLANE, vN, vHALF, vINB, vB0, vB1, vDV, vDVb, vL16, vN16, vC2, vHW, vBA, vKV, vXA = range(1, 16)
VB = 16
VOB = 160
ACC = (180, 196)
ACF = 228
ABUF = 212
ABUF2 = 228
VQ0, VQ1 = 180, 184
AXB = 244
VT = 248


def vr(b, n):
    return f"v[{b}:{b+n-1}]"


def sr(b, n):
    return f"s[{b}:{b+n-1}]"


def stamp(a, i):
    if not STAMPS:
        return
    if i == 0:
        a("s_memtime s[94:95]")
        return
    a(f"s_memtime {sr(sST,2)}\ns_waitcnt lgkmcnt(0)\nv_writelane_b32 v0, s{sST}, {i}")


def rstamp(a, i):
    if not STAMPS:
        return
    a(f"s_memrealtime {sr(sST,2)}\ns_waitcnt lgkmcnt(0)\nv_writelane_b32 v0, s{sST}, {32+i}")


def stamp_flush(a):
    if not STAMPS:
        return
    a(f"""v_writelane_b32 v0, s94, 0
          s_memrealtime {sr(sST,2)}
          s_waitcnt lgkmcnt(0)
          v_writelane_b32 v0, s{sST}, 31
          s_lshl_b32 s{sT1}, s2, 3
          s_add_u32 s{sT1}, s{sT1}, s{sW}
          s_lshl_b32 s{sT1}, s{sT1}, 8
          s_add_u32 s{sT1}, s{sT1}, {128 << 20}
          v_lshlrev_b32 v1, 2, v{vLANE}
          buffer_store_dword v0, v1, {sr(SWS,4)}, s{sT1} offen
          s_mov_b64 exec, -1""")


def srd(a, s, p, nbytes):
    a(f"""s_mov_b32 s{s}, s{p}
          s_and_b32 s{s+1}, s{p+1}, 0xffff
          s_mov_b32 s{s+2}, {nbytes}
          s_mov_b32 s{s+3}, 0x20000""")


def mfma(a, d, x, y, c=None):
    cs = vr(d, 16) if c is None else c
    a(f"v_mfma_f32_32x32x16_bf16 {vr(d,16)}, {vr(x,4)}, {vr(y,4)}, {cs}")


K_F1, K_K, K_V, K_F2, K_END = 18, 59, 62, 65, 110
PD1, PD2 = 4, 7
K_STREAM = [0, 3 * TB, 3 * TB + SLOT]


def slot_of(k):
    return (k % 5) * SLOT if k < K_F2 else ((k - K_F2) % 8) * SLOT


def voff_ops(pitch, t0=VT + 6, t1=VT + 7):
    return lines(f"""v_bfe_u32 v{t0}, v{vLANE}, 2, 2
          v_lshl_add_u32 v{t0}, v{vHALF}, 2, v{t0}
          v_mul_u32_u24 v{t0}, {pitch}, v{t0}
          v_bfe_u32 v{t1}, v{vLANE}, 4, 1
          v_lshl_add_u32 v{t0}, v{t1}, 6, v{t0}
          v_and_b32 v{t1}, 3, v{vLANE}
          v_lshl_add_u32 v{vDV}, v{t1}, 4, v{t0}
          v_add_u32 v{vDVb}, {8 * pitch - 1024}, v{vDV}""")


def ld2(srd_, k, va=vDV, vb=vDVb, soff=None, flags=""):
    so = soff or f"s{sDO}"
    return [("v", f"buffer_load_dwordx4 v{va}, {sr(srd_,4)}, {so} offen {flags}lds", f"D{k}"),
            ("v", f"buffer_load_dwordx4 v{vb}, {sr(srd_,4)}, {so} offen offset:1024 {flags}lds", f"D{k}")]


def hs_src(k, half):
    if k < K_K:
        hs = 2 * (k - K_F1) + half
        if hs >= 81:
            return None
        h, c = divmod(hs, 9)
        return SW1, "w1", h, c * 64 * 9216
    hs = 2 * (k - K_F2) + half
    h, c = divmod(hs, 10)
    if c < 9:
        return SW2, "w2", h, c * 64 * 1152
    return SWO, "wo", h, 0


def dma_half(k, half):
    if k >= K_END:
        return []
    m0 = f"s_add_u32 m0, s{sQ2K}, {slot_of(k) + half * 8192}"
    if K_K <= k < K_F2:
        so = (K_STREAM[k - K_K] if k < K_V else (k - K_V) * SLOT) + half * 8192
        return [m0, f"v_add_u32 v{vXA}, {so}, v{vKV}"] + ld2(SKV, k, vXA, vXA, "0" if k < K_V else f"s{sVOFF}", "sc1 ")
    src = hs_src(k, half)
    if src is None:
        return []
    srd_, kind, h, const = src
    base = {"w1": sW1Q, "w2": sW2Q, "wo": sWOQ}[kind]
    ops = [m0, f"s_add_u32 s{sDO}, s{sPAN+h}, s{base}"]
    if const:
        ops.append(f"s_add_u32 s{sDO}, s{sDO}, {const}")
    return ops + ld2(srd_, k)


def dma_sym(k):
    m0 = f"s_add_u32 m0, s{sW2K}, {slot_of(k)}"
    if k < K_F1:
        return [m0, f"s_add_u32 s{sDO}, s{sQB}, {k * 32 * 3456}"] + ld2(SQKV, k)
    if K_K <= k < K_F2:
        so = K_STREAM[k - K_K] if k < K_V else (k - K_V) * SLOT
        return [m0, f"s_lshl_b32 s{sDO}, s{sSB}, 13", f"s_add_u32 s{sDO}, s{sDO}, {so}", f"v_add_u32 v{vXA}, s{sDO}, v{vKV}"] + \
            ld2(SKV, k, vXA, vXA, "0" if k < K_V else f"s{sVOFF}", "sc1 ")
    s0, s1 = hs_src(k, 0), hs_src(k, 1)
    pre = []
    if k == K_F1:
        pre = voff_ops(9216)
    if k == K_F2:
        pre = voff_ops(1152, 238, 239)
    if s0[1] == s1[1]:
        assert s0[2] == s1[2]
        base = {"w1": sW1S, "w2": sW2S}[s0[1]]
        return pre + [m0, f"s_add_u32 s{sDO}, s{sPAN+s0[2]}, s{base}", f"s_add_u32 s{sDO}, s{sDO}, {s0[3]}"] + ld2(s0[0], k)
    assert s0[1] == "w2" and s1[1] == "wo" and s0[3] == 8 * 64 * 1152
    return [m0, f"s_add_u32 s{sDO}, s{sPAN+s0[2]}, s{sH4}"] + ld2(SD, k)


def ahead(k):
    return k + (PD1 if k < K_F2 else PD2)


FINE = {}


def top(a, k, ltag=None):
    a.wait(ltag=ltag, vtag=f"D{k+1}")
    a("s_barrier")


def lds_ref(b0, b1, addr):
    return (b0, addr) if addr < 65536 else (b1, addr - 65536)


def a_read_ops(buf, b0, b1, addr, estride, tag):
    v, o = lds_ref(b0, b1, addr)
    assert o + estride < 65536
    return [("l", f"ds_read_b64_tr_b16 {vr(buf,2)}, v{v} offset:{o}", tag),
            ("l", f"ds_read_b64_tr_b16 {vr(buf+2,2)}, v{v} offset:{o+estride}", tag)]


def gelu_ops(acc):
    C1 = f32(-2.0 * 1.4426950408889634 * 0.7978845608028654)
    ops = []
    for p in range(0, 16, 4):
        xs = [acc + p + i for i in range(4)]
        ts = [VT + i for i in range(4)]
        ops += [f"v_mul_f32 v{t}, v{x}, v{x}" for x, t in zip(xs, ts)]
        ops += [f"v_fmaak_f32 v{t}, v{t}, v{vC2}, {C1}" for t in ts]
        ops += [f"v_mul_f32 v{t}, v{x}, v{t}" for x, t in zip(xs, ts)]
        ops += [f"v_exp_f32 v{t}, v{t}" for t in ts]
        ops += [f"v_add_f32 v{t}, 1.0, v{t}" for t in ts]
        ops += [f"v_rcp_f32 v{t}, v{t}" for t in ts]
        ops += [f"v_mul_f32 v{t}, v{x}, v{t}" for x, t in zip(xs, ts)]
        ops += [f"v_cvt_pk_bf16_f32 v{acc+p//2}, v{ts[0]}, v{ts[1]}",
                f"v_cvt_pk_bf16_f32 v{acc+p//2+1}, v{ts[2]}, v{ts[3]}"]
    return ops


def bias_ops(acc, vaddr, off):
    return [("l", f"ds_read_b128 {vr(acc+4*c,4)}, v{vaddr} offset:{off+32*c}", "bias") for c in range(4)]


def hw_ops(acc, vaddr, off):
    return [("l", f"ds_write_b128 v{vaddr}, {vr(acc,4)} offset:{off}", "hw"),
            ("l", f"ds_write_b128 v{vaddr}, {vr(acc+4,4)} offset:{off+1024}", "hw")]


def pop(a, ops, n):
    for _ in range(n):
        if ops:
            a(ops.pop(0))


def w0_only(a, body):
    u = a.uid()
    a(f"s_cbranch_vccz L_w{u}")
    a(body)
    a(f"L_w{u}:")


DIST = 3


VF = 196


def poll_loop(a, load, ok_ops):
    u = a.uid()
    a(f"s_mov_b32 s{sT5}, 0\nL_p{u}:")
    a(ok_ops)
    a(f"""s_cbranch_scc1 L_pd{u}
          s_sleep 1""")
    a(load)
    a(f"""s_waitcnt vmcnt(0)
          s_add_u32 s{sT5}, s{sT5}, 1
          s_cmp_lt_u32 s{sT5}, 0x100000
          s_cbranch_scc1 L_p{u}
          L_pd{u}:""")


def non_load():
    return f"buffer_load_dword v{AXB+2}, off, {sr(SDBG,4)}, 0 sc1"


def kv_load():
    return f"buffer_load_dword v{AXB+2}, v{AXB+3}, {sr(SWS,4)}, 0 offen sc1"


def kv_ok():
    return f"""v_cmp_eq_u32 {sr(sM,2)}, s{sNON}, v{AXB+2}
          s_nop 1
          s_andn2_b32 s{sT0}, s{sT3}, s{sM}
          s_cmp_eq_u32 s{sT0}, 0"""


def fl_store_ops(h):
    return ["s_mov_b64 exec, 1",
            ("v", f"buffer_store_dword v{VF}, v{VF+2}, {sr(SWS,4)}, s{sKVF} offen offset:{256*h} sc1", f"f{h}"),
            "s_mov_b64 exec, -1"]


def pp_reads(k0, n, estride, h, s):
    i = n * h + s
    addr = slot_of(k0 + i // 8) + (i % 8) * 2048
    return a_read_ops(ABUF + 4 * (s % 4), vB0, vB1, addr, estride, f"a{h}_{s}")


def p3_ops():
    return f"""s_mul_i32 s{sT1}, s{sJ}, 576
          s_mul_i32 s{sT2}, s{sRK}, 36
          s_add_u32 s{sT1}, s{sT1}, s{sT2}
          s_mul_i32 s{sT1}, s{sT1}, 1152
          s_mul_i32 s{sT2}, s{sW}, {41*128}
          s_add_u32 s{sT1}, s{sT1}, s{sT2}
          v_lshlrev_b32 v{VT+6}, 7, v{vLANE}
          s_lshl_b32 s{sT2}, s{sRK}, 3
          s_add_u32 s{sT2}, s{sT2}, s{sW}
          s_mul_i32 s{sT2}, s{sT2}, {6*128}
          s_mul_i32 s{sT3}, s{sJ}, {72*1152}
          s_add_u32 s{sT2}, s{sT2}, s{sT3}
          s_mov_b32 exec_hi, 0x1ff
          buffer_load_dword v{VOB}, v{VT+6}, {sr(SW2,4)}, s{sT1} offen
          s_mov_b64 exec, 63
          buffer_load_dword v{VOB+1}, v{VT+6}, {sr(SWO,4)}, s{sT2} offen
          s_mov_b64 exec, -1"""


def qkv_epilogue(a, tag):
    a(f"""s_lshl_b32 s{sT5}, s{sJ}, 6
          s_lshl_b32 s{sT1}, s{sT}, 1
          s_add_u32 s{sT5}, s{sT5}, s{sT1}
          s_add_u32 s{sT5}, s{sT5}, s{sG}
          s_mul_i32 s{sT5}, s{sT5}, {TB}
          s_lshl_b32 s{sT4}, s{sG}, 9
          s_add_u32 s{sT4}, s{sT4}, {QXOFF}
          v_xor_b32 v{VT+7}, 1, v{vHALF}
""")
    if "p3mid" in ABL:
        a(p3_ops())
        a.vq += ["kv"] * 2
    a(f"""          s_cmp_eq_u32 s{sQ}, 1
          s_cbranch_scc1 L_ep1{tag}
          s_cmp_eq_u32 s{sQ}, 2
          s_cbranch_scc1 L_ep2{tag}
          s_cmp_eq_u32 s{sQ}, 3
          s_cbranch_scc1 L_ep3{tag}""")
    qk_scatter(a, 0, ACC[0])
    qk_scatter(a, 4, ACC[1])
    a(f"s_branch L_epd{tag}")
    for q in (1, 2, 3):
        a(f"L_ep{q}{tag}:")
        qk_scatter(a, q, ACC[0])
        if q < 3:
            a(f"s_branch L_epv{tag}")
    a(f"L_epv{tag}:")
    v_store(a, ACC[1])
    a(f"L_epd{tag}:")
    a.vq += ["kv"] * 2
    a.wait_lds_all()


def bias_pre(h):
    return [f"s_lshl_b32 s{sT2}, s{sPAN+h}, 1", f"v_add_u32 v{VT+6}, s{sT2}, v{vBA}"] + bias_ops(ACF, VT + 6, 0)


def ffn1(a, sb):
    tag = "AB"[sb]
    if sb == 0:
        a(bias_pre(0))
        for s in range(DIST):
            a(pp_reads(K_F1, 36, 512, 0, s))
    for h in range(9):
        comp = (h % 2) == sb
        ops = []
        if not comp and h > 0:
            ops = gelu_ops(ACF) + [f"s_lshl_b32 s{sT2}, s{sPAN+h-1}, 5", f"v_add_u32 v{VT+6}, s{sT2}, v{vHW}"] + hw_ops(ACF, VT + 6, 0)
        for s in range(36):
            i = 36 * h + s
            k = K_F1 + i // 8
            if i % 8 == 0:
                if h == 3 and s == 4:
                    a.wait(vtag="kv")
                    poll_loop(a, non_load(), f"v_readfirstlane_b32 s{sNON}, v{AXB+2}\ns_cmp_lg_u32 s{sNON}, 0")
                top(a, k, ltag=f"a{h}_{s}" if comp and s else None)
                if k == K_K - PD1 and sb == 1:
                    a(f"""s_sub_u32 s{sT2}, 4, s{sT}
                          s_max_i32 s{sT2}, s{sT2}, 0
                          s_lshl_b32 s{sT3}, 15, s{sT2}
                          s_and_b32 s{sT3}, s{sT3}, 15""")
                    a.wait(vtag="kvf")
                    poll_loop(a, kv_load(), kv_ok())
            if comp:
                if s == 0:
                    a.wait_lds("bias")
                a.wait_lds(f"a{h}_{s}")
                mfma(a, ACF, ABUF + 4 * (s % 4), VB + 4 * s)
                if s + DIST < 36:
                    a(pp_reads(K_F1, 36, 512, h, s + DIST))
            else:
                if s % 4 == 0:
                    d = dma_half(ahead(k), (i % 8) // 4)
                    if i + 4 >= 324:
                        d = d + dma_half(ahead(k), 1)
                    a(d[:-1])
                    last = d[-1:]
                    if s == 0 and ops:
                        a("s_nop 7\ns_nop 3")
                if s % 4 == 2:
                    a(last)
                if s >= 1:
                    pop(a, ops, 4)
                if s == 33:
                    assert not ops
                    if h <= 1:
                        qkv_epilogue(a, tag)
                    if h in (3, 4):
                        a(f"""s_lshl_b32 s{sT2}, s{sQ}, 10
                              s_add_u32 s{sT2}, s{sT2}, s{sSTG}
                              v_add_u32 v{VT+6}, s{sT2}, v{vL16}
                              s_lshl_b32 s{sT2}, s{sG}, 9
                              s_lshl_b32 s{sT3}, s{sQ}, 2
                              s_add_u32 s{sT2}, s{sT2}, s{sT3}
                              s_add_u32 s{sT2}, s{sT2}, {QXOFF}
                              v_add_u32 v{VT+7}, s{sT2}, v{vN16}""")
                        a.lds(f"ds_read_b128 {vr(VQ0,4)}, v{VT+6}", "q")
                        a.lds(f"ds_read_b32 v{VQ1}, v{VT+7}", "q")
                    if h < 8:
                        a(bias_pre(h + 1))
                if s == 35 and h == 3:
                    a(f"""v_mov_b32 v{AXB+2}, s{sNON}
                          s_lshl_b32 s{sT2}, s{sJ}, 5
                          s_add_u32 s{sT2}, s{sT2}, s{sT}
                          s_lshl_b32 s{sT2}, s{sT2}, 2
                          s_add_u32 s{sT2}, s{sT2}, {WS_KVF}
                          s_cmp_eq_u32 s{sW}, 0
                          s_cselect_b32 s{sT2}, s{sT2}, 0x7ff00000
                          v_mov_b32 v{AXB+3}, s{sT2}
                          s_mov_b64 exec, 1""")
                    a.vm(f"buffer_store_dword v{AXB+2}, v{AXB+3}, {sr(SWS,4)}, 0 offen sc1", "pub")
                    a("s_mov_b64 exec, -1")
                if s == 35 and h <= 1:
                    a.vm(non_load(), "kv")
                if s == 35 and h == 6:
                    a(f"""s_lshl_b32 s{sT2}, s{sJ}, 5
                          s_add_u32 s{sT2}, s{sT2}, s{sT}
                          s_lshl_b32 s{sT2}, s{sT2}, 2
                          s_add_u32 s{sT2}, s{sT2}, {WS_KVF - 16}
                          v_and_b32 v{AXB+3}, 3, v{vLANE}
                          v_lshl_add_u32 v{AXB+3}, v{AXB+3}, 2, s{sT2}""")
                    a.vm(kv_load(), "kvf")
                if s == 35 and h < 8:
                    for s2 in range(DIST):
                        a(pp_reads(K_F1, 36, 512, h + 1, s2))
        if h % 2 == 1:
            stamp(a, 16 + h // 2)
    if sb == 0:
        a(f"s_lshl_b32 s{sT2}, s{sPAN+8}, 5\nv_add_u32 v{VT+6}, s{sT2}, v{vHW}\ns_nop 7\ns_nop 1")
        a(gelu_ops(ACF))
        a(hw_ops(ACF, VT + 6, 0))
    a.wait_lds_all()


def ffn2_epi_ops(acc):
    ops = [f"v_cvt_pk_bf16_f32 v{acc+i}, v{acc+2*i}, v{acc+2*i+1}" for i in range(8)]
    ops += ["s_nop 0",
            f"v_permlane32_swap_b32 v{acc}, v{acc+2}",
            f"v_permlane32_swap_b32 v{acc+1}, v{acc+3}",
            f"v_permlane32_swap_b32 v{acc+4}, v{acc+6}",
            f"v_permlane32_swap_b32 v{acc+5}, v{acc+7}"]
    return ops


def part_store_ops(acc, h):
    return [f"s_lshl_b32 s{sT4}, s{sPAN+h}, 6",
            f"s_add_u32 s{sT4}, s{sT4}, s{sPB}",
            ("v", f"buffer_store_dwordx4 {vr(acc,4)}, v{vL16}, {sr(SWS,4)}, s{sT4} offen sc1", f"p{h}"),
            ("v", f"buffer_store_dwordx4 {vr(acc+4,4)}, v{vL16}, {sr(SWS,4)}, s{sT4} offen offset:1024 sc1", f"p{h}")]


def reduce_block(a, hreg_ops, hook=None):
    X, Bq, PR, AC = 16, 20, 32, 64
    vXO, vBO = 24, 25
    s_row, s_col, s_p, s_f = sQB, sW1Q, sW1S, sH4
    a(hreg_ops)
    a(f"""s_lshl_b32 s{s_f}, s{sT2}, 8
          s_add_u32 s{s_f}, s{s_f}, s{sSTG}
          s_lshr_b32 s{sT1}, s{sPAN}, 7
          s_add_u32 s{sT2}, s{sT2}, s{sT1}
          s_sub_u32 s{sT1}, s{sT2}, 9
          s_cmp_ge_u32 s{sT2}, 9
          s_cselect_b32 s{sT2}, s{sT1}, s{sT2}
          s_lshl_b32 s{sT2}, s{sT2}, 3
          s_add_u32 s{sT2}, s{sT2}, s{sJ}
          buffer_load_dword v{VF+4}, v{VF+3}, {sr(SWS,4)}, s{s_f} offen sc1
          s_bfe_u32 s{s_row}, s{sT2}, 0x10001
          s_lshl_b32 s{sT0}, s{sT}, 1
          s_add_u32 s{s_row}, s{s_row}, s{sT0}
          s_mul_i32 s{s_row}, s{s_row}, {32*1152}
          s_lshr_b32 s{s_col}, s{sT2}, 2
          s_lshl_b32 s{s_col}, s{s_col}, 6
          s_and_b32 s{sT0}, s{sT2}, 1
          s_lshl_b32 s{sT0}, s{sT0}, 5
          s_add_u32 s{s_col}, s{s_col}, s{sT0}
          s_add_u32 s{s_row}, s{s_row}, s{s_col}
          s_mul_i32 s{sT0}, s{sT}, 73728
          s_lshl_b32 s{s_p}, s{sT2}, 10
          s_add_u32 s{s_p}, s{s_p}, s{sT0}
          s_add_u32 s{s_p}, s{s_p}, {WS_PART}
          v_mul_u32_u24 v{vXO}, 1152, v{vN}
          v_lshl_add_u32 v{vXO}, v{vHALF}, 4, v{vXO}
          v_lshlrev_b32 v{vBO}, 4, v{vHALF}
          buffer_load_dwordx4 {vr(X,4)}, v{vXO}, {sr(SX,4)}, s{s_row} offen
          buffer_load_dwordx4 {vr(Bq,4)}, v{vBO}, {sr(SB,4)}, s{s_col} offen
          s_waitcnt vmcnt(2)""")
    if hook:
        a(hook)
    poll_loop(a, f"buffer_load_dword v{VF+4}, v{VF+3}, {sr(SWS,4)}, s{s_f} offen sc1",
              f"v_cmp_eq_u32 {sr(sM,2)}, v{VF+4}, v{VF}\ns_nop 1\ns_cmp_eq_u64 {sr(sM,2)}, -1")
    for jj in range(8):
        a(f"buffer_load_dwordx4 {vr(PR+4*jj,4)}, v{vL16}, {sr(SWS,4)}, s{s_p} offen sc1")
        if jj < 7:
            a(f"s_add_u32 s{s_p}, s{s_p}, {32*73728}")

    def unpack_add(src, first):
        for r in range(4):
            if first:
                a(f"v_lshlrev_b32 v{AC+2*r}, 16, v{src+r}\nv_and_b32 v{AC+2*r+1}, 0xffff0000, v{src+r}")
            else:
                t = VT + 2 * (r % 2)
                a(f"""v_lshlrev_b32 v{t}, 16, v{src+r}
                      v_and_b32 v{t+1}, 0xffff0000, v{src+r}
                      v_add_f32 v{AC+2*r}, v{AC+2*r}, v{t}
                      v_add_f32 v{AC+2*r+1}, v{AC+2*r+1}, v{t+1}""")
    a("s_waitcnt vmcnt(8)")
    unpack_add(X, True)
    unpack_add(Bq, False)
    for jj in range(8):
        a(f"s_waitcnt vmcnt({7-jj})")
        unpack_add(PR + 4 * jj, False)
    for r in range(4):
        a(f"v_cvt_pk_bf16_f32 v{X+r}, v{AC+2*r}, v{AC+2*r+1}")
    a(f"buffer_store_dwordx4 {vr(X,4)}, v{vXO}, {sr(SOUT,4)}, s{s_row} offen\ns_nop 1")


def ffn2(a, sb):
    def bfrag(s):
        return VB + 4 * s if s < 36 else VOB + 4 * (s - 36)

    if sb == 0:
        for s in range(DIST):
            a(pp_reads(K_F2, 40, 1024, 0, s))
    for h in range(9):
        comp = (h % 2) == sb
        if h == 8 and sb == 1:
            break
        ops = []
        late = []
        if not comp and h > 0:
            ops = ffn2_epi_ops(ACF)
            late = part_store_ops(ACF, h - 1)
        late_at = max([s for s in range(0, 40, 4) if dma_half(ahead(K_F2 + (40 * h + s) // 8), 0)] + [4]) + 3
        for s in range(40):
            i = 40 * h + s
            k = K_F2 + i // 8
            if i % 8 == 0 and k + 1 < K_END and h < 8:
                top(a, k, ltag=f"a{h}_{s}" if comp else None)
            if comp:
                a.wait_lds(f"a{h}_{s}")
                mfma(a, ACF, ABUF + 4 * (s % 4), bfrag(s), "0" if s == 0 else None)
                if s == 1:
                    a(f"s_lshl_b32 s{sT2}, s{sPAN+h}, 3\nv_add_u32 v{VT+6}, s{sT2}, v{vBA}")
                if s == 35:
                    a(a_read_ops(AXB, VT + 6, VT + 6, 0, 256, "ax"))
                if h == 8 and s == 20:
                    a.wait(vtag="p6")
                    a(fl_store_ops(6))
                if s + DIST < 40:
                    a(pp_reads(K_F2, 40, 1024, h, s + DIST))
                if s == 39:
                    a.wait_lds("ax")
                    mfma(a, ACF, AXB, VOB + 16)
            else:
                if s % 4 == 0:
                    d = dma_half(ahead(k), (i % 8) // 4)
                    a(d[:-1])
                    last = d[-1:]
                    if s == 0 and ops:
                        a("s_nop 7\ns_nop 3")
                if s % 4 == 2:
                    a(last)
                if s >= 2:
                    pop(a, ops, 3)
                if s == late_at:
                    assert not ops
                    if h >= 3:
                        a.wait(vtag=f"p{h-3}")
                        a(fl_store_ops(h - 3))
                    a(late)
                if s == 39 and h < 8:
                    for s2 in range(DIST):
                        a(pp_reads(K_F2, 40, 1024, h + 1, s2))
        if h == 7:
            a.wait(vtag=f"D{K_END-1}")
            a.wait(vtag=f"D{K_END-4}")
            a("s_barrier")
            rstamp(a, 0)
        if h % 2 == 1:
            stamp(a, 21 + h // 2)
    a("s_nop 7\ns_nop 3")
    a(ffn2_epi_ops(ACF))
    hl = 8 - sb
    a(part_store_ops(ACF, hl))
    stamp(a, 25)
    if sb == 1:
        a.wait(vtag="p5")
        a(fl_store_ops(5))
        reduce_block(a, f"s_mov_b32 s{sT2}, s{sQ}", fl_store_ops(7))
        rstamp(a, 4)
        reduce_block(a, f"s_add_u32 s{sT2}, s{sQ}, 4")
        rstamp(a, 5)
    else:
        a(f"s_cmp_eq_u32 s{sQ}, 0\ns_cbranch_scc1 L_f2_r8\ns_waitcnt vmcnt(0)")
        a(fl_store_ops(8))
        a("s_branch L_f2_done\nL_f2_r8:")
        reduce_block(a, f"s_mov_b32 s{sT2}, 8", fl_store_ops(8))
    stamp(a, 9)


QKV_MASK2 = 0
for _l in range(64):
    _t, _pc = _l // 16, _l % 4
    if (_t == 0 and _pc < 2) or _t in (1, 2) or (_t == 3 and _pc == 0):
        QKV_MASK2 |= 1 << _l


def qkv_reads(s, second):
    if s >= 36:
        return []
    addr = slot_of(s // 2) + (s % 2) * 8192 + (1024 if second else 0)
    return a_read_ops((ABUF2 if second else ABUF) + 4 * (s % 4), vB0, vB1, addr, 2048, f"{'b' if second else 'a'}{s}")


def qkv_body(a, swapped):
    acc0, acc1 = ACC
    for s in range(36):
        k = s // 2
        c = "0" if s == 0 else None
        if s % 2 == 0:
            top(a, k, ltag=f"a{s}")
            d = dma_sym(ahead(k))
            d = (d[:-1], d[-1:])
        a.wait_lds(f"a{s}")
        mfma(a, acc0, ABUF + 4 * (s % 4), VB + 4 * s, c)
        a(qkv_reads(s + 2, False))
        if s % 2 == 1:
            a(d[1])
        a.wait_lds(f"b{s}")
        if swapped:
            mfma(a, acc1, VB + 4 * s, ABUF2 + 4 * (s % 4), c)
        else:
            mfma(a, acc1, ABUF2 + 4 * (s % 4), VB + 4 * s, c)
        a(qkv_reads(s + 2, True))
        if s % 2 == 0:
            a(d[0])


def granule_dest(G):
    if G >= 36:
        return None
    part, gg = divmod(G, 18)
    pair, r = divmod(gg, 9)
    if r == 4:
        return part, 4096 + pair * 8
    head, gm = (2 * pair, r) if r < 4 else (2 * pair + 1, r - 5)
    return part, head * 1024 + (gm >> 1) * 512 + (gm & 1) * 8


def qk_scatter(a, T, acc):
    for c in range(4):
        d0, d1 = granule_dest(8 * T + 2 * c), granule_dest(8 * T + 2 * c + 1)
        if d0 is None:
            continue
        assert d0[0] == d1[0]
        a(f"""v_cvt_pk_bf16_f32 v{acc+4*c}, v{acc+4*c}, v{acc+4*c+1}
              v_cvt_pk_bf16_f32 v{acc+4*c+1}, v{acc+4*c+2}, v{acc+4*c+3}""")
        if d0[0] == 1:
            lo = min(d0[1], d1[1])
            t = VT + c
            if d1[1] >= d0[1]:
                a(f"s_mov_b32 s{sT1}, {d1[1]-d0[1]}\nv_mad_u32_u24 v{t}, v{vHALF}, s{sT1}, v{vN16}")
            else:
                a(f"s_mov_b32 s{sT1}, {d0[1]-d1[1]}\nv_mad_u32_u24 v{t}, v{VT+7}, s{sT1}, v{vN16}")
            a(f"""s_add_u32 s{sT1}, s{sT5}, {lo}
                  buffer_store_dwordx2 {vr(acc+4*c,2)}, v{t}, {sr(SWS,4)}, s{sT1} offen sc1""")
        else:
            def ldsoff(o):
                return ("m", o) if o < 4096 else ("x", o - 4096)
            (k0, o0), (k1, o1) = ldsoff(d0[1]), ldsoff(d1[1])
            base = {"m": sSTG, "x": sT4}
            t = VT + c
            a(f"""s_add_u32 s{sT1}, s{base[k0]}, {o0}
                  s_add_u32 s{sT2}, s{base[k1]}, {o1}
                  s_sub_u32 s{sT2}, s{sT2}, s{sT1}
                  v_mul_lo_u32 v{t}, v{vHALF}, s{sT2}
                  v_add3_u32 v{t}, v{t}, v{vN16}, s{sT1}
                  ds_write_b64 v{t}, {vr(acc+4*c,2)}""")


def v_store(a, acc):
    t0, t1, t2 = VT, VT + 1, VT + 2
    for i in range(8):
        a(f"v_cvt_pk_bf16_f32 v{acc+i}, v{acc+2*i}, v{acc+2*i+1}")
    a(f"""s_sub_u32 s{sT1}, s{sQ}, 1
          s_lshl_b32 s{sT1}, s{sT1}, 5
          v_add_u32 v{t0}, s{sT1}, v{vN}
          v_mul_u32_u24 v{t1}, 57, v{t0}
          v_lshrrev_b32 v{t1}, 10, v{t1}
          v_mul_u32_u24 v{t2}, 54, v{t1}
          v_add_u32 v{t2}, v{t0}, v{t2}
          v_mad_u32_u24 v{t2}, v{vHALF}, 18, v{t2}
          v_lshlrev_b32 v{t2}, 4, v{t2}
          v_cmp_lt_u32 {sr(sM,2)}, 3, v{t1}
          v_mov_b32 v{t1}, 0x7fffff00
          s_add_u32 s{sT1}, s{sT5}, {WS_V - WS_K}
          v_cndmask_b32 v{t2}, v{t2}, v{t1}, {sr(sM,2)}
          buffer_store_dwordx4 {vr(acc,4)}, v{t2}, {sr(SWS,4)}, s{sT1} offen sc1
          buffer_store_dwordx4 {vr(acc+4,4)}, v{t2}, {sr(SWS,4)}, s{sT1} offen offset:576 sc1""")


def attention(a):
    S = lambda u: 16 + 16 * u
    KB = [212, 216, 220, 224]
    KF = (240, 244)
    VQ = [160, 164, 168, 172, 176, 180, 184, 188, 192, 196, 200, 204, 208,
          212, 216, 220, 224, 244]
    V = lambda u, x: VQ[2 * u + x]
    P = lambda u: S(u) if u != 1 else S(0) + 8
    OA = S(1)
    vKa, vKb, vKc, vXa, vXb, vXc = vB0, vB1, vHW, vBA, vC2, 238
    vM = VT + 1
    ONES = "0x3f803f80"
    NEGB = 0xff7f
    S4, S0, S2 = 4 * SLOT, 0, 2 * SLOT
    a(f"""s_mul_i32 s{sT2}, s{sG}, {TB}
          s_lshl_b32 s{sT3}, s{sQ}, 10
          s_add_u32 s{sT3}, s{sT3}, s{sT2}
          v_add_u32 v{vKb}, s{sT3}, v{vL16}
          v_add_u32 v{vKa}, {S4}, v{vKb}
          s_lshl_b32 s{sT3}, s{sQ}, 2
          s_add_u32 s{sT3}, s{sT3}, s{sT2}
          s_add_u32 s{sT3}, s{sT3}, 4096
          v_add_u32 v{vXb}, s{sT3}, v{vN16}
          v_add_u32 v{vXa}, {S4}, v{vXb}
          s_mov_b32 s{sT3}, {-TB & 0xffffffff}
          s_cmp_eq_u32 s{sG}, 0
          s_cselect_b32 s{sT3}, {S4 + 2*TB}, s{sT3}
          v_add_u32 v{vKc}, s{sT3}, v{vKb}
          v_add_u32 v{vXc}, s{sT3}, v{vXb}
          s_lshl_b32 s{sT5}, s{sT}, 1
          s_add_u32 s{sT5}, s{sT5}, s{sG}
          s_sub_u32 s{sT5}, s{sT5}, 8""")

    def kaddr(u):
        if u < 2:
            return vKa, vXa, u * TB
        if u == 2:
            return vKc, vXc, 0
        return vKb, vXb, (u - 3) * TB

    def kread(u):
        vk, vx, off = kaddr(u)
        a.lds(f"ds_read_b128 {vr(KB[u%4],4)}, v{vk} offset:{off}", f"k{u}")
        a.lds(f"ds_read_b32 v{VT+4+u%4}, v{vx} offset:{off}", f"k{u}")

    def qk(u):
        kf = KF[u % 2]
        a(f"""s_add_i32 s{sT0}, s{sT5}, {u}
              s_cmp_lt_i32 s{sT0}, 0
              s_cselect_b32 s{sT0}, {NEGB}, 0""")
        a.wait_lds(f"k{u}")
        a(f"v_mov_b32 v{kf}, v{VT+4+u%4}\nv_mov_b32 v{kf+1}, s{sT0}")
        mfma(a, S(u), KB[u % 4], VQ0, None if u in (0, 8) else "0")
        a("s_nop 0")
        mfma(a, S(u), kf, VQ1)

    setup = []
    for kf in KF:
        setup += [f"v_mov_b32 v{kf+2}, 0", f"v_mov_b32 v{kf+3}, 0"]
    setup += lines(f"""v_mov_b32 v{VQ1+2}, 0
          v_mov_b32 v{VQ1+3}, 0
          v_cmp_eq_u32 {sr(sM,2)}, 0, v{vHALF}
          v_mov_b32 v{vM}, 0x3f80
          v_lshlrev_b32 v{VT+2}, 2, v{vHALF}
          v_cndmask_b32 v{VQ1+1}, 0, v{vM}, {sr(sM,2)}
          v_cndmask_b32 v{VQ1}, 0, v{VQ1}, {sr(sM,2)}
          v_sub_u32 v{VT+2}, v{vN}, v{VT+2}
          v_mov_b32 v{VT+3}, {f32(-1e30)}""")
    for r in range(16):
        cr = 8 * (r // 4) + r % 4
        setup += lines(f"""v_cmp_le_i32 {sr(sM,2)}, {cr}, v{VT+2}
              s_nop 1
              v_cndmask_b32 v{S(8)+r}, v{VT+3}, 0, {sr(sM,2)}
              v_cndmask_b32 v{S(0)+r}, 0, v{VT+3}, {sr(sM,2)}""")
    a(setup)
    plan = [[0, 1, 2], [3, 4, 5, 6], [7, 8]]
    for st in range(3):
        top(a, K_K + st)
        for u in plan[st]:
            kread(u)
        a(dma_sym(ahead(K_K + st)))
        for u in plan[st]:
            qk(u)
    a(f"""s_mul_i32 s{sT2}, s{sG}, {TB}
          s_mul_i32 s{sT3}, s{sQ}, 1152
          s_add_u32 s{sT2}, s{sT2}, s{sT3}
          s_add_u32 s{sT2}, s{sT2}, {S2}
          v_mad_u32_u24 v{vKa}, v{vHALF}, 18, v{vN}
          v_lshl_add_u32 v{vKa}, v{vKa}, 4, s{sT2}
          v_cmp_gt_u32 {sr(sM,2)}, 18, v{vN}""")
    for qd in VQ:
        for r in range(4):
            a(f"v_mov_b32 v{qd+r}, {ONES}")
    vplan = [[0, 1, 2, 3], [4, 5, 6, 7], [8]]
    mx = []
    regs = list(range(S(0), S(8) + 16))
    mx.append(f"v_max3_f32 v{vM}, v{regs[0]}, v{regs[1]}, v{regs[2]}")
    mx.append(f"v_max3_f32 v{VT+2}, v{regs[3]}, v{regs[4]}, v{regs[5]}")
    regs = regs[6:]
    k = 0
    while regs:
        dd = vM if k % 2 == 0 else VT + 2
        mx.append(f"v_max3_f32 v{dd}, v{dd}, v{regs[0]}, v{regs[1]}")
        regs = regs[2:]
        k += 1
    for st in range(3):
        if st > 0:
            a.wait_lds_all()
        top(a, K_V + st)
        a(f"s_mov_b64 exec, {sr(sM,2)}")
        for u in vplan[st]:
            for x in range(2):
                a.lds(f"ds_read_b128 {vr(V(u,x),4)}, v{vKa} offset:{u*TB + x*576}", "v")
        a("s_mov_b64 exec, -1")
        a(dma_sym(ahead(K_V + st)))
        pop(a, mx, 24)
    a(mx)
    a(f"""v_max_f32 v{vM}, v{vM}, v{VT+2}
          v_mov_b32 v{VT+2}, v{vM}
          s_nop 1
          v_permlane32_swap_b32 v{vM}, v{VT+2}
          v_max_f32 v{vM}, v{vM}, v{VT+2}
          v_mul_f32 v{vM}, s{sC}, v{vM}""")
    a.wait_lds_all()
    stamp(a, 6)
    pend = []
    for u in range(9):
        for r in range(16):
            a(f"v_fma_f32 v{S(u)+r}, v{S(u)+r}, s{sC}, -v{vM}")
            if r in (3, 11) and pend:
                pend.pop(0)()
        for r in range(16):
            a(f"v_exp_f32 v{S(u)+r}, v{S(u)+r}")
            if r in (3, 11) and pend:
                pend.pop(0)()
        for r in range(8):
            a(f"v_cvt_pk_bf16_f32 v{P(u)+r}, v{S(u)+2*r}, v{S(u)+2*r+1}")
        if u >= 1:
            us = [0, 1] if u == 1 else [u]
            for uu in us:
                pend.append(lambda uu=uu: mfma(a, OA, V(uu, 0), P(uu), "0" if uu == 0 else None))
                pend.append(lambda uu=uu: mfma(a, OA, V(uu, 1), P(uu) + 4))
    a("s_nop 1")
    while pend:
        pend.pop(0)()
    a(f"""s_nop 15
          v_rcp_f32 v{vM}, v{OA+10}
          v_cmp_eq_u32 {sr(sM,2)}, 0, v{vHALF}""")
    for r in range(10):
        a(f"v_mul_f32 v{OA+r}, v{OA+r}, v{vM}")
    for r in range(5):
        a(f"v_cvt_pk_bf16_f32 v{VT+r}, v{OA+2*r}, v{OA+2*r+1}")
    a(f"v_cndmask_b32 v{VT+4}, 0, v{VT+4}, {sr(sM,2)}")


def main_kernel(a):
    a("s_cmp_ge_u32 s2, 256\ns_cbranch_scc1 L_main_end")
    stamp(a, 0)
    a(f"""s_load_dwordx16 {sr(4,16)}, s[0:1], 0
          s_load_dwordx4 {sr(20,4)}, s[0:1], 64
          s_load_dwordx2 {sr(24,2)}, s[0:1], 80
          s_memrealtime {sr(sNON,2)}
          v_and_b32 v{vLANE}, 63, v0
          v_lshrrev_b32 v{VT}, 6, v0
          v_and_b32 v{vN}, 31, v0
          v_readfirstlane_b32 s{sW}, v{VT}
          v_bfe_u32 v{vHALF}, v0, 5, 1
          v_lshlrev_b32 v{vL16}, 4, v{vLANE}
          v_lshlrev_b32 v{vN16}, 4, v{vN}
          s_and_b32 s{sJ}, s2, 3
          s_lshl_b32 s{sJ}, s{sJ}, 1
          s_bfe_u32 s{sT1}, s2, 0x10003
          s_add_u32 s{sJ}, s{sJ}, s{sT1}
          s_lshr_b32 s{sT}, s2, 4
          s_bfe_u32 s{sT1}, s2, 0x10002
          s_lshl_b32 s{sT1}, s{sT1}, 4
          s_add_u32 s{sT}, s{sT}, s{sT1}
          s_and_b32 s{sQ}, s{sW}, 3
          s_lshr_b32 s{sG}, s{sW}, 2
          v_lshrrev_b32 v{VT}, 3, v{vLANE}
          v_mul_u32_u24 v{VT}, 1152, v{VT}
          v_and_b32 v{VT+1}, 7, v{vLANE}
          v_lshl_add_u32 v{VT}, v{VT+1}, 4, v{VT}
          s_lshl_b32 s{sT1}, s{sT}, 3
          s_add_u32 s{sT1}, s{sT1}, s{sW}
          s_mul_i32 s{sT1}, s{sT1}, {8*1152}
          s_waitcnt lgkmcnt(0)""")
    srd(a, SX, P_X, 2048 * 576 * 2)
    XR, XF = 16, 64
    for i in range(9):
        a.vm(f"buffer_load_dwordx4 {vr(XR+4*i,4)}, v{VT}, {sr(SX,4)}, s{sT1} offen offset:{128*i}", "x")
    if STAMPS:
        a(f"v_writelane_b32 v{VT+6}, s{sNON}, 0")
    srd(a, SD, P_DBG, 256)
    a(f"""s_or_b32 s{sNON}, s{sNON}, 1
          v_mov_b32 v{VT+4}, s{sNON}
          s_or_b32 s{sT2}, s{sW}, s2
          s_cselect_b32 s{sT2}, 0x1000, 0
          v_mov_b32 v{VT+5}, s{sT2}
          s_mov_b64 exec, 1""")
    a.vm(f"buffer_store_dword v{VT+4}, v{VT+5}, {sr(SD,4)}, 0 offen sc1", "ns")
    a("s_mov_b64 exec, -1")
    if "nocodepf" not in ABL:
        a(f"""s_getpc_b64 {sr(SKV,2)}
              L_pc:
              s_and_b32 s{SKV+1}, s{SKV+1}, 0xffff
              s_mov_b32 s{SKV+2}, L_code_end - L_pc
              s_mov_b32 s{SKV+3}, 0x20000
              s_bfe_u32 s{sT2}, s2, 0x30003
              s_lshl_b32 s{sT2}, s{sT2}, 13
              s_cmp_eq_u32 s{sW}, 7
              s_cselect_b32 s{sT2}, s{sT2}, 0x100000
              v_lshlrev_b32 v{VT+4}, 7, v{vLANE}""")
        a.vm(f"buffer_load_dword v{VOB+2}, v{VT+4}, {sr(SKV,4)}, s{sT2} offen", "cpf")
    srd(a, SB1, P_B1, 4608 * 2)
    a(f"""v_lshlrev_b32 v{VT+2}, 2, v0
          s_mul_i32 s{sT1}, s{sJ}, 1152""")
    a.vm(f"buffer_load_dword v{AXB+2}, v{VT+2}, {sr(SB1,4)}, s{sT1} offen", "b1")
    srd(a, SQKV, P_WQKV, 576 * 1728 * 2)
    srd(a, SWO, P_WO, 576 * 576 * 2)
    srd(a, SW1, P_W1, 576 * 4608 * 2)
    srd(a, SW2, P_W2, 4608 * 576 * 2)
    srd(a, SWS, P_WS, WS_BYTES)
    srd(a, SOUT, P_OUT, 2048 * 576 * 2)
    srd(a, SB, P_B2, 576 * 2)
    a(f"""s_mul_i32 s{sT1}, s{sJ}, {64*TB}
          s_add_u32 s{SKV}, s{P_WS}, s{sT1}
          s_addc_u32 s{SKV+1}, s{P_WS+1}, 0
          s_and_b32 s{SKV+1}, s{SKV+1}, 0xffff
          s_mov_b32 s{SKV+2}, {8 << 20}
          s_mov_b32 s{SKV+3}, 0x20000
          v_bfe_u32 v{VT}, v{vLANE}, 2, 2
          v_lshlrev_b32 v{vINB}, 6, v{VT}
          v_bfe_u32 v{VT+1}, v{vLANE}, 4, 1
          v_lshl_add_u32 v{vINB}, v{VT+1}, 5, v{vINB}
          v_and_b32 v{VT+4}, 3, v{vLANE}
          v_lshl_add_u32 v{vINB}, v{VT+4}, 3, v{vINB}
          v_mul_u32_u24 v{VT}, 3456, v{VT}
          v_lshrrev_b32 v{VT+1}, 4, v{vLANE}
          v_lshl_add_u32 v{VT+1}, v{VT+1}, 2, v{VT+4}
          v_lshl_add_u32 v{VT}, v{VT+1}, 4, v{VT}
          v_cmp_lt_u32 vcc, 8, v{VT+1}
          v_mov_b32 v{VT+4}, {1152-144}
          v_mov_b32 v{VT+5}, {2304-64-1024}
          v_cndmask_b32 v{VT+4}, 0, v{VT+4}, vcc
          v_add_u32 v{vDV}, v{VT}, v{VT+4}
          v_cmp_lt_u32 vcc, 3, v{VT+1}
          v_mov_b32 v{VT+4}, {1152+112-1024}
          s_mov_b32 s{sVOFF}, {WS_V - WS_K}
          v_cndmask_b32 v{VT+4}, v{VT+4}, v{VT+5}, vcc
          v_add_u32 v{vDVb}, v{VT}, v{VT+4}
          s_mov_b32 vcc_lo, {QKV_MASK2 & 0xffffffff}
          s_mov_b32 vcc_hi, {QKV_MASK2 >> 32}
          v_mov_b32 v{VT+4}, 0x40000000
          v_cndmask_b32 v{vDVb}, v{VT+4}, v{vDVb}, vcc
          s_and_b32 s{sSB}, s{sQ}, 1
          s_xor_b32 s{sSB}, s{sSB}, s{sG}
          s_lshl_b32 s{sT2}, s{sSB}, 2
          s_add_u32 s{sT2}, s{sT2}, s{sQ}
          s_lshl_b32 s{sW2K}, s{sT2}, 11
          s_lshl_b32 s{sQ2K}, s{sQ}, 11
          s_mul_i32 s{sHB}, s{sG}, {HG}
          s_add_u32 s{sHB}, s{sHB}, {HOFF}
          s_mul_i32 s{sQB}, s{sT2}, {4*3456}
          s_mul_i32 s{sT1}, s{sJ}, 144
          s_add_u32 s{sQB}, s{sQB}, s{sT1}
          s_barrier""")
    for k in range(PD1):
        a(dma_sym(k))
    a(f"""s_and_b32 s{sRK}, s{sT}, 15
          s_mul_i32 s{sT1}, s{sT}, 57
          s_lshr_b32 s{sT1}, s{sT1}, 9
          s_mul_i32 s{sT1}, s{sT1}, 9
          s_sub_u32 s{sT1}, s{sT}, s{sT1}
          s_lshl_b32 s{sPAN}, s{sT1}, 7""")
    for h in range(1, 9):
        a(f"""s_add_u32 s{sPAN+h}, s{sPAN+h-1}, 128
              s_cmp_eq_u32 s{sPAN+h}, 1152
              s_cselect_b32 s{sPAN+h}, 0, s{sPAN+h}""")
    a(f"""s_lshl_b32 s{sSTG}, s{sPAN+8}, 5
          s_add_u32 s{sSTG}, s{sSTG}, s{sHB}
          s_mul_i32 s{sT2}, s{sQ}, {16*9216}
          s_mul_i32 s{sT1}, s{sJ}, 1152
          s_add_u32 s{sW1Q}, s{sT2}, s{sT1}
          s_mul_i32 s{sT2}, s{sSB}, {64*9216}
          s_add_u32 s{sW1S}, s{sW1Q}, s{sT2}
          s_mul_i32 s{sT2}, s{sQ}, {16*1152}
          s_mul_i32 s{sT1}, s{sJ}, {576*1152}
          s_add_u32 s{sW2Q}, s{sT2}, s{sT1}
          s_mul_i32 s{sT2}, s{sSB}, {64*1152}
          s_add_u32 s{sW2S}, s{sW2Q}, s{sT2}
          s_mul_i32 s{sT2}, s{sJ}, 72
          s_mul_i32 s{sT1}, s{sQ}, 18
          s_add_u32 s{sT1}, s{sT1}, s{sT2}
          s_mul_i32 s{sWOQ}, s{sT1}, 1152
          s_add_u32 s{sT2}, s{sW2Q}, {512*1152}
          s_cmp_lg_u32 s{sSB}, 0
          s_cselect_b32 s{sH4}, s{sWOQ}, s{sT2}
          s_cselect_b64 {sr(SD,2)}, {sr(SWO,2)}, {sr(SW2,2)}
          s_cselect_b32 s{SD+2}, s{SWO+2}, s{SW2+2}
          s_mov_b32 s{SD+3}, 0x20000
          s_lshl_b32 s{sT1}, s{sJ}, 5
          s_add_u32 s{sT1}, s{sT1}, s{sT}
          s_mul_i32 s{sPB}, s{sT1}, 73728
          s_lshl_b32 s{sT1}, s{sG}, 11
          s_add_u32 s{sPB}, s{sPB}, s{sT1}
          s_lshr_b32 s{sT1}, s{sQ}, 1
          s_lshl_b32 s{sT1}, s{sT1}, 12
          s_add_u32 s{sPB}, s{sPB}, s{sT1}
          s_add_u32 s{sPB}, s{sPB}, {WS_PART}
          s_lshl_b32 s{sT2}, s{sT}, 1
          s_sub_u32 s{sT2}, s{sT2}, 8
          s_mul_i32 s{sT2}, s{sT2}, {TB}
          s_add_u32 s{sT2}, s{sT2}, s{sQ2K}
          v_add_u32 v{vKV}, s{sT2}, v{vL16}
          s_mov_b32 s{sC}, {f32(18 ** -0.5 * 1.4426950408889634)}
          v_mov_b32 v{vC2}, {f32(-2.0 * 1.4426950408889634 * 0.7978845608028654 * 0.044715)}""")
    PF = AXB
    a(f"""s_mul_i32 s{sT1}, s{sW}, 27
          v_add_u32 v{VT}, s{sT1}, v{vLANE}
          v_mul_u32_u24 v{VT+1}, 171, v{VT}
          v_lshrrev_b32 v{VT+1}, 10, v{VT+1}
          v_mul_u32_u24 v{VT+4}, 6, v{VT+1}
          v_sub_u32 v{VT+4}, v{VT}, v{VT+4}
          v_mul_u32_u24 v{VT+1}, 3456, v{VT+1}
          v_lshrrev_b32 v{VT+5}, 1, v{VT+4}
          v_mul_u32_u24 v{VT+5}, 1152, v{VT+5}
          v_and_b32 v{VT+4}, 1, v{VT+4}
          v_mul_u32_u24 v{VT+4}, 140, v{VT+4}
          v_add3_u32 v{VT+1}, v{VT+1}, v{VT+4}, v{VT+5}
          s_mul_i32 s{sT1}, s{sRK}, {36*3456}
          s_mul_i32 s{sT2}, s{sJ}, 144
          s_add_u32 s{sT1}, s{sT1}, s{sT2}
          s_mov_b64 exec, 0x7ffffff""")
    a.vm(f"buffer_load_dword v{PF}, v{VT+1}, {sr(SQKV,4)}, s{sT1} offen", "pf")
    a(f"""s_mov_b64 exec, -1
          s_mul_i32 s{sT1}, s{sW}, 41
          v_add_u32 v{VT}, s{sT1}, v{vLANE}
          v_mul_u32_u24 v{VT+1}, 911, v{VT}
          v_lshrrev_b32 v{VT+1}, 13, v{VT+1}
          v_mul_u32_u24 v{VT+1}, {9216 - 1152}, v{VT+1}
          v_lshl_add_u32 v{VT+1}, v{VT}, 7, v{VT+1}
          s_mul_i32 s{sT1}, s{sRK}, {36*9216}
          s_mul_i32 s{sT2}, s{sJ}, 1152
          s_add_u32 s{sT1}, s{sT1}, s{sT2}""")
    a.wait(vtag="x")
    a("s_mov_b32 exec_hi, 0x1ff")
    a.vm(f"buffer_load_dword v{PF+1}, v{VT+1}, {sr(SW1,4)}, s{sT1} offen", "pf")
    a(f"""s_mov_b64 exec, -1
          v_lshlrev_b32 v{AXB+3}, 3, v0""")
    if "p3early" in ABL:
        a(p3_ops().replace(f"v{VT+6}", f"v{VT+7}"))
        a.vq += ["pf"] * 2
    if STAMPS:
        a(f"v_readlane_b32 s{sT2}, v{VT+6}, 0\ns_nop 3\nv_writelane_b32 v0, s{sT2}, 30")
    stamp(a, 1)
    for i in range(36):
        a(f"v_lshlrev_b32 v{XF+2*i}, 16, v{XR+i}\nv_and_b32 v{XF+2*i+1}, 0xffff0000, v{XR+i}")
    A0, A1 = VT, VT + 2

    def rowsum(dst):
        a(f"""v_pk_add_f32 {vr(A0,2)}, {vr(A0,2)}, {vr(A1,2)}
              v_add_f32 v{dst}, v{A0}, v{A0+1}
              s_nop 1
              v_add_f32_dpp v{dst}, v{dst}, v{dst} quad_perm:[1,0,3,2] row_mask:0xf bank_mask:0xf
              s_nop 1
              v_add_f32_dpp v{dst}, v{dst}, v{dst} quad_perm:[2,3,0,1] row_mask:0xf bank_mask:0xf
              s_nop 1
              v_add_f32_dpp v{dst}, v{dst}, v{dst} row_half_mirror row_mask:0xf bank_mask:0xf""")

    Q0_, Q1_ = XR, XR + 2
    a(f"v_pk_add_f32 {vr(A0,2)}, {vr(XF,2)}, {vr(XF+2,2)}\nv_pk_add_f32 {vr(A1,2)}, {vr(XF+4,2)}, {vr(XF+6,2)}")
    a(f"v_pk_mul_f32 {vr(Q0_,2)}, {vr(XF,2)}, {vr(XF,2)}\nv_pk_mul_f32 {vr(Q1_,2)}, {vr(XF+2,2)}, {vr(XF+2,2)}")
    for i in range(2, 36):
        if i >= 4:
            d = A0 if i % 2 == 0 else A1
            a(f"v_pk_add_f32 {vr(d,2)}, {vr(d,2)}, {vr(XF+2*i,2)}")
        d = Q0_ if i % 2 == 0 else Q1_
        a(f"v_pk_fma_f32 {vr(d,2)}, {vr(XF+2*i,2)}, {vr(XF+2*i,2)}, {vr(d,2)}")
    MEAN, VAR = VT + 4, VT + 6
    rowsum(MEAN)
    a(f"v_mov_b32 v{A0}, v{Q0_}\nv_mov_b32 v{A0+1}, v{Q0_+1}\nv_mov_b32 v{A1}, v{Q1_}\nv_mov_b32 v{A1+1}, v{Q1_+1}")
    rowsum(VAR)
    a(f"""v_mul_f32 v{MEAN}, {f32(1.0/576)}, v{MEAN}
          v_mul_f32 v{VAR}, {f32(1.0/576)}, v{VAR}
          v_fma_f32 v{VAR}, -v{MEAN}, v{MEAN}, v{VAR}
          v_max_f32 v{VAR}, 0, v{VAR}
          v_cvt_pk_bf16_f32 v{MEAN}, v{MEAN}, v{MEAN}
          v_lshlrev_b32 v{MEAN}, 16, v{MEAN}
          v_cvt_pk_bf16_f32 v{VAR}, v{VAR}, v{VAR}
          v_lshlrev_b32 v{VAR}, 16, v{VAR}
          v_add_f32 v{VAR}, {f32(1e-5)}, v{VAR}
          v_cvt_pk_bf16_f32 v{VAR}, v{VAR}, v{VAR}
          v_lshlrev_b32 v{VAR}, 16, v{VAR}
          v_sqrt_f32 v{VAR}, v{VAR}
          s_nop 0
          v_cvt_pk_bf16_f32 v{VAR}, v{VAR}, v{VAR}
          v_lshlrev_b32 v{VAR}, 16, v{VAR}
          v_rcp_f32 v{VAR}, v{VAR}
          v_sub_f32 v{MEAN}, 0, v{MEAN}
          v_mov_b32 v{VAR+1}, v{VAR}
          v_mov_b32 v{MEAN+1}, v{MEAN}""")
    for i in range(36):
        a(f"v_pk_add_f32 {vr(XF+2*i,2)}, {vr(XF+2*i,2)}, {vr(MEAN,2)}")
    if "nodround" not in ABL:
        for i in range(36):
            a(f"v_cvt_pk_bf16_f32 v{XR+i}, v{XF+2*i}, v{XF+2*i+1}")
        for i in range(36):
            a(f"v_lshlrev_b32 v{XF+2*i}, 16, v{XR+i}\nv_and_b32 v{XF+2*i+1}, 0xffff0000, v{XR+i}")
    for i in range(36):
        a(f"v_pk_mul_f32 {vr(XF+2*i,2)}, {vr(XF+2*i,2)}, {vr(VAR,2)}")
    a(f"""v_and_b32 v{A0}, 7, v{vLANE}
          v_lshrrev_b32 v{A0+1}, 3, v{vLANE}
          v_xor_b32 v{A0+1}, v{A0+1}, v{A0}
          v_lshlrev_b32 v{A0}, 9, v{A0}
          v_lshl_add_u32 v{A0}, v{A0+1}, 4, v{A0}
          s_lshl_b32 s{sT2}, s{sQ}, 7
          s_add_u32 s{sT2}, s{sT2}, s{sHB}
          v_add_u32 v{A0}, s{sT2}, v{A0}""")
    for i in range(9):
        for r in range(4):
            a(f"v_cvt_pk_bf16_f32 v{XR+4*i+r}, v{XF+8*i+2*r}, v{XF+8*i+2*r+1}")
        a(f"ds_write_b128 v{A0}, {vr(XR+4*i,4)} offset:{4096*i}")
    for m in range(4):
        a(f"""v_add_u32 v{VT+4+m}, {2*m}, v{vHALF}
              v_xor_b32 v{VT+4+m}, v{VT+4+m}, v{vN}
              v_lshlrev_b32 v{VT+4+m}, 4, v{VT+4+m}
              v_lshl_add_u32 v{VT+4+m}, v{vHALF}, 9, v{VT+4+m}
              v_add_u32 v{VT+4+m}, s{sHB}, v{VT+4+m}""")
    a.wait(vtag="b1")
    a(f"""v_lshlrev_b32 v{VT}, 16, v{AXB+2}
          v_and_b32 v{VT+1}, 0xffff0000, v{AXB+2}
          v_cmp_gt_u32 vcc, {288*8}, v{AXB+3}
          v_add_u32 v{AXB+3}, {BOFF}, v{AXB+3}
          s_and_saveexec_b64 {sr(sT2,2)}, vcc
          ds_write_b64 v{AXB+3}, {vr(VT,2)}
          s_mov_b64 exec, -1""")
    a(f"""v_lshl_add_u32 v{vB0}, v{vHALF}, 12, v{vINB}
          s_lshl_b32 s{sT1}, s{sQ}, 8
          v_add_u32 v{vB0}, s{sT1}, v{vB0}
          v_add_u32 v{vB1}, 0x10000, v{vB0}
          s_cmp_eq_u32 s{sW}, 1
          s_cselect_b64 vcc, -1, 0
          s_waitcnt lgkmcnt(0)""")
    srd(a, SDBG, P_DBG, 256)
    top(a, -1)
    for s in range(2):
        a.lds(f"ds_read_b128 {vr(VB+4*s,4)}, v{VT+4+s%4} offset:{1024*s}", "x")
    for s in range(2):
        a(qkv_reads(s, False))
        a(qkv_reads(s, True))
    for s in range(2, 36):
        a.lds(f"ds_read_b128 {vr(VB+4*s,4)}, v{VT+4+s%4} offset:{1024*s}", "x")
    a.wait_lds_all()
    stamp(a, 2)
    rstamp(a, 8)
    a(f"s_cmp_eq_u32 s{sQ}, 0\ns_cbranch_scc0 L_qkv_sw")
    st0 = a.snap()
    qkv_body(a, False)
    a("s_branch L_qkv_done\nL_qkv_sw:")
    a.restore(st0)
    qkv_body(a, True)
    a("L_qkv_done:")
    assert not a.lq
    stamp(a, 3)
    rstamp(a, 7)
    a(f"""v_lshl_add_u32 v{vB0}, v{vHALF}, 10, v{vINB}
          s_lshr_b32 s{sT2}, s{sQ}, 1
          s_lshl_b32 s{sT1}, s{sT2}, 8
          v_add_u32 v{vB0}, s{sT1}, v{vB0}
          v_add_u32 v{vB1}, 0x10000, v{vB0}
          s_lshl_b32 s{sT1}, s{sT2}, 7
          s_add_u32 s{sT1}, s{sT1}, {BOFF}
          v_lshl_add_u32 v{vBA}, v{vHALF}, 4, s{sT1}
          s_lshl_b32 s{sT1}, s{sT2}, 11
          s_add_u32 s{sT1}, s{sT1}, s{sHB}
          v_add_u32 v{vHW}, s{sT1}, v{vL16}
          s_cmp_lg_u32 s{sSB}, 0
          s_cbranch_scc1 L_f1_B""")
    st0 = a.snap()
    ffn1(a, 0)
    a("s_branch L_f1_done\nL_f1_B:")
    a.restore(st0)
    ffn1(a, 1)
    a("L_f1_done:")
    stamp(a, 5)
    rstamp(a, 6)
    attention(a)
    stamp(a, 7)
    a(f"""s_barrier
          v_add_u32 v{vHW}, s{sHB}, v{vL16}""")
    for s in range(36):
        a(f"ds_read_b128 {vr(VB+4*s,4)}, v{vHW} offset:{1024*s}")
    a(f"""v_bfe_u32 v{vBA}, v{vLANE}, 2, 3
          v_lshrrev_b32 v{vC2}, 1, v{vBA}
          v_mul_u32_u24 v{vC2}, 18, v{vC2}
          v_and_b32 v{vBA}, 1, v{vBA}
          v_add3_u32 v{vC2}, v{vC2}, v{vBA}, 16
          v_mul_u32_u24 v{vC2}, 1152, v{vC2}
          v_lshl_add_u32 v{vC2}, v{vHALF}, 6, v{vC2}
          v_and_b32 v{vBA}, 3, v{vLANE}
          v_lshl_add_u32 v{vC2}, v{vBA}, 4, v{vC2}
          s_mul_i32 s{sT1}, s{sG}, 5120
          s_add_u32 s{sT1}, s{sT1}, {OF}
          v_add_u32 v{vHW}, s{sT1}, v{vL16}
          s_lshl_b32 s{sT2}, s{sQ}, 10
          v_add_u32 v{vBA}, s{sT2}, v{vHW}
          s_lshl_b32 s{sT2}, s{sQ}, 2
          v_add_u32 v{vXA}, s{sT2}, v{vHW}
          v_lshl_add_u32 v{vB0}, v{vHALF}, 9, v{vINB}
          s_lshr_b32 s{sT2}, s{sQ}, 1
          s_lshl_b32 s{sT2}, s{sT2}, 8
          v_add_u32 v{vB0}, s{sT2}, v{vB0}
          v_add_u32 v{vB1}, 0x10000, v{vB0}
          s_waitcnt lgkmcnt(0)
          s_barrier
          ds_write_b128 v{vBA}, {vr(VT,4)}
          ds_write_b32 v{vXA}, v{VT+4} offset:4096
          s_mul_i32 s{sT1}, s{sJ}, {72*1152}
          s_lshl_b32 s{sT2}, s{sW}, 7
          s_add_u32 s{sT2}, s{sT2}, s{sT1}
          s_lshl_b32 s{sT3}, s{sW}, 10
          s_add_u32 m0, s{sT3}, {XB}
          s_add_u32 s{sT1}, s{sT1}, 1024""")
    a.vm(f"buffer_load_dwordx4 v{vC2}, {sr(SWO,4)}, s{sT2} offen lds", "xb")
    a(f"s_mov_b32 m0, {XB + 8192}")
    w0_only(a, f"buffer_load_dwordx4 v{vC2}, {sr(SWO,4)}, s{sT1} offen lds")
    for k in range(K_F2 + PD1, K_F2 + PD2):
        a(dma_sym(k))
    a(f"""s_lshr_b32 s{sT2}, s{sQ}, 1
          s_lshl_b32 s{sT2}, s{sT2}, 9
          s_add_u32 s{sT2}, s{sT2}, {XB}
          v_add_u32 v{vBA}, s{sT2}, v{vINB}
          s_waitcnt lgkmcnt(0)
          s_barrier""")
    for k in range(5):
        a.lds(f"ds_read_b128 {vr(VOB+4*k,4)}, v{vHW} offset:{1024*k}", "ob")
    a(f"""v_mov_b32 v{VF}, s{sNON}
          s_mul_i32 s{sKVF}, s{sT}, {9*256}
          s_add_u32 s{sKVF}, s{sKVF}, {WS_FLAG}
          s_lshr_b32 s{sT2}, s{sJ}, 1
          s_lshl_b32 s{sT2}, s{sT2}, 6
          s_add_u32 s{sSTG}, s{sKVF}, s{sT2}
          s_lshr_b32 s{sT2}, s{sQ}, 1
          s_lshl_b32 s{sT2}, s{sT2}, 1
          s_add_u32 s{sT2}, s{sT2}, s{sG}
          s_lshl_b32 s{sT2}, s{sT2}, 6
          s_lshl_b32 s{sT3}, s{sJ}, 3
          s_add_u32 s{sT2}, s{sT2}, s{sT3}
          v_mov_b32 v{VF+2}, s{sT2}
          v_and_b32 v{VF+3}, 7, v{vLANE}
          v_lshlrev_b32 v{VF+3}, 3, v{VF+3}""")
    a.wait_lds_all()
    stamp(a, 8)
    a(f"s_cmp_lg_u32 s{sSB}, 0\ns_cbranch_scc1 L_f2_B")
    st0 = a.snap()
    ffn2(a, 0)
    a("s_branch L_f2_done\nL_f2_B:")
    a.restore(st0)
    ffn2(a, 1)
    a("L_f2_done:")
    if STAMPS:
        a("s_waitcnt vmcnt(0)")
    stamp(a, 10)
    stamp_flush(a)
    a("L_main_end:\ns_endpgm\nL_code_end:")


def ablate(L):
    out = []
    for ln in L:
        if "nokst" in ABL and ln.startswith("buffer_store_dwordx2") and "sc1" in ln:
            ln = ln.replace(" offen sc1", " offen offset:0").replace("s81 offen", "s93 offen") if False else "s_nop 0"
        out.append(ln)
    return out


def build():
    out = ["; Fused LayerNorm + (sliding-window attention || GELU FFN) + residual; generated by gen/gen6.py",
           f"; @launch grid=(256,1,1) block=(512,1,1) lds={LDS_BYTES}",
           '.amdgcn_target "amdgcn-amd-amdhsa--gfx950"\n.text']
    a = Asm()
    a(f".globl {NAME}_kernel\n.p2align 8\n.type {NAME}_kernel,@function\n{NAME}_kernel:")
    main_kernel(a)
    out += ablate(a.L)
    out.append(f""".section .rodata,"a"
.p2align 6
.amdhsa_kernel {NAME}_kernel
  .amdhsa_next_free_vgpr 256
  .amdhsa_next_free_sgpr 102
  .amdhsa_accum_offset 256
  .amdhsa_group_segment_fixed_size 0
  .amdhsa_kernarg_size 88
  .amdhsa_user_sgpr_count 2
  .amdhsa_user_sgpr_kernarg_segment_ptr 1
  .amdhsa_system_sgpr_workgroup_id_x 1
.end_amdhsa_kernel""")
    return "\n".join(out) + "\n"


if __name__ == "__main__":
    STAMPS = "--stamps" in sys.argv
    ABL = set(x[6:] for x in sys.argv if x.startswith("--abl="))
    args = [x for x in sys.argv[1:] if not x.startswith("--")]
    path = args[0] if args else f"cdna_kernels/{NAME}.s"
    open(path, "w").write(build())
    print("wrote", path)
```

```python
import struct
import sys

NAME = "parallel_sum__sliding_block__dense_activation_gelu__prompt"
STAMPS = False
ABL = set()


def f32(x):
    return "0x%08x" % struct.unpack("<I", struct.pack("<f", x))[0]


def lines(txt):
    return [x.strip() for x in txt.strip("\n").split("\n") if x.strip()]


class Asm:
    def __init__(self):
        self.L = []
        self.lq = []
        self.vq = []
        self.n = 0

    def __call__(self, txt):
        if isinstance(txt, list):
            for t in txt:
                self(t)
            return
        if isinstance(txt, tuple):
            (self.lds if txt[0] == "l" else self.vm)(txt[1], txt[2])
            return
        self.L += lines(txt)

    def lds(self, txt, tag):
        self(txt)
        self.lq.append(tag)

    def vm(self, txt, tag):
        self(txt)
        self.vq.append(tag)

    @staticmethod
    def _need(q, tag):
        if tag not in q:
            return None, q
        idx = max(i for i, t in enumerate(q) if t == tag)
        return len(q) - 1 - idx, q[idx + 1:]

    def wait(self, ltag=None, vtag=None):
        parts = []
        if vtag is not None:
            n, self.vq = self._need(self.vq, vtag)
            if n is not None:
                parts.append(f"vmcnt({min(n, 63)})")
        if ltag is not None:
            n, self.lq = self._need(self.lq, ltag)
            if n is not None:
                parts.append(f"lgkmcnt({min(n, 15)})")
        if parts:
            self("s_waitcnt " + " ".join(parts))

    def wait_lds(self, tag):
        self.wait(ltag=tag)

    def wait_lds_all(self):
        self("s_waitcnt lgkmcnt(0)")
        self.lq = []

    def wait_vm_all(self):
        self("s_waitcnt vmcnt(0)")
        self.vq = []

    def uid(self):
        self.n += 1
        return self.n

    def snap(self):
        return list(self.lq), list(self.vq)

    def restore(self, st):
        self.lq, self.vq = list(st[0]), list(st[1])


SLOT = 16384
HOFF = 5 * SLOT
HG = 36864
BOFF = HOFF + 2 * HG
XB = 8 * SLOT
OF = XB + 9216
QOFF = 32 * 1024
QXOFF = BOFF + 2304
NOFF = QXOFF + 1024
LDS_BYTES = NOFF + 64

TB = 4608
WS_K = 0
WS_V = 4 << 20
WS_FLAG = 8 << 20
WS_KVF = 9 << 20
WS_PART = 16 << 20
WS_BYTES = 268435456

P_X, P_WQKV, P_WO, P_W1, P_B1, P_W2, P_B2 = 4, 6, 8, 12, 14, 16, 18
P_OUT, P_DBG, P_WS = 20, 22, 24
sPAN = 4
SX, SQKV, SW1, SKV, SB1, SWO, SW2, SWS, SD, SOUT, SB = 28, 32, 36, 40, 44, 48, 52, 56, 60, 64, 16
SDBG = 44
sW, sQ, sG, sJ, sT = 68, 69, 70, 71, 72
sQB, sW1Q, sW1S, sW2Q, sW2S, sWOQ, sH4 = 73, 74, 75, 76, 77, 78, 79
sT0, sT1, sT2, sT3, sT4, sT5 = 80, 81, 82, 83, 84, 85
sPB, sSB, sC, sW2K, sHB, sDO, sKVF, sVOFF = 86, 87, 88, 89, 90, 91, 92, 93
sQ2K, sMINE, sSTG, sRK = 13, 14, 20, 21
sM = 26
sNON = 96
sST = 100

vLANE, vN, vHALF, vINB, vB0, vB1, vDV, vDVb, vL16, vN16, vC2, vHW, vBA, vKV, vXA = range(1, 16)
VB = 16
VOB = 160
ACC = (180, 196)
ACF = 228
ABUF = 212
ABUF2 = 228
VQ0, VQ1 = 180, 184
AXB = 244
VT = 248


def vr(b, n):
    return f"v[{b}:{b+n-1}]"


def sr(b, n):
    return f"s[{b}:{b+n-1}]"


def stamp(a, i):
    if not STAMPS:
        return
    if i == 0:
        a("s_memtime s[94:95]")
        return
    a(f"s_memtime {sr(sST,2)}\ns_waitcnt lgkmcnt(0)\nv_writelane_b32 v0, s{sST}, {i}")


def rstamp(a, i):
    if not STAMPS:
        return
    a(f"s_memrealtime {sr(sST,2)}\ns_waitcnt lgkmcnt(0)\nv_writelane_b32 v0, s{sST}, {32+i}")


def stamp_flush(a):
    if not STAMPS:
        return
    a(f"""v_writelane_b32 v0, s94, 0
          s_memrealtime {sr(sST,2)}
          s_waitcnt lgkmcnt(0)
          v_writelane_b32 v0, s{sST}, 31
          s_lshl_b32 s{sT1}, s2, 3
          s_add_u32 s{sT1}, s{sT1}, s{sW}
          s_lshl_b32 s{sT1}, s{sT1}, 8
          s_add_u32 s{sT1}, s{sT1}, {128 << 20}
          v_mov_b32 v{vKV}, v{vLANE}
          v_lshlrev_b32 v1, 2, v{vLANE}
          buffer_store_dword v0, v1, {sr(SWS,4)}, s{sT1} offen
          s_mov_b64 exec, -1""")
    if "dbgout" in ABL:
        a(f"""v_readlane_b32 s{sT1}, v0, 30
              v_subrev_u32 v2, 26, v{vKV}
              s_cmp_eq_u32 s2, 100
              s_cselect_b32 s{sT2}, s{sW}, 0
              v_subrev_u32 v0, s{sT1}, v0
              s_cmp_eq_u32 s{sT2}, 1
              s_cselect_b32 s{sT2}, 0, 0x1000
              v_lshlrev_b32 v2, 2, v2
              s_mov_b32 exec_lo, 0xc0000000
              s_mov_b32 exec_hi, 0x1ff
              buffer_store_dword v0, v2, {sr(SDBG,4)}, s{sT2} offen
              s_mov_b64 exec, -1""")


def srd(a, s, p, nbytes):
    a(f"""s_mov_b32 s{s}, s{p}
          s_and_b32 s{s+1}, s{p+1}, 0xffff
          s_mov_b32 s{s+2}, {nbytes}
          s_mov_b32 s{s+3}, 0x20000""")


def mfma(a, d, x, y, c=None):
    cs = vr(d, 16) if c is None else c
    a(f"v_mfma_f32_32x32x16_bf16 {vr(d,16)}, {vr(x,4)}, {vr(y,4)}, {cs}")


K_F1, K_K, K_V, K_F2, K_END = 18, 59, 62, 65, 110
PD1, PD2 = 4, 7
K_STREAM = [0, 3 * TB, 3 * TB + SLOT]


def slot_of(k):
    return (k % 5) * SLOT if k < K_F2 else ((k - K_F2) % 8) * SLOT


def voff_ops(pitch, t0=VT + 6, t1=VT + 7):
    return lines(f"""v_bfe_u32 v{t0}, v{vLANE}, 2, 2
          v_lshl_add_u32 v{t0}, v{vHALF}, 2, v{t0}
          v_mul_u32_u24 v{t0}, {pitch}, v{t0}
          v_bfe_u32 v{t1}, v{vLANE}, 4, 1
          v_lshl_add_u32 v{t0}, v{t1}, 6, v{t0}
          v_and_b32 v{t1}, 3, v{vLANE}
          v_lshl_add_u32 v{vDV}, v{t1}, 4, v{t0}
          v_add_u32 v{vDVb}, {8 * pitch - 1024}, v{vDV}""")


def ld2(srd_, k, va=vDV, vb=vDVb, soff=None, flags=""):
    so = soff or f"s{sDO}"
    return [("v", f"buffer_load_dwordx4 v{va}, {sr(srd_,4)}, {so} offen {flags}lds", f"D{k}"),
            ("v", f"buffer_load_dwordx4 v{vb}, {sr(srd_,4)}, {so} offen offset:1024 {flags}lds", f"D{k}")]


def hs_src(k, half):
    if k < K_K:
        hs = 2 * (k - K_F1) + half
        if hs >= 81:
            return None
        h, c = divmod(hs, 9)
        return SW1, "w1", h, c * 64 * 9216
    hs = 2 * (k - K_F2) + half
    h, c = divmod(hs, 10)
    if c < 9:
        return SW2, "w2", h, c * 64 * 1152
    return SWO, "wo", h, 0


def dma_half(k, half):
    if k >= K_END:
        return []
    m0 = f"s_add_u32 m0, s{sQ2K}, {slot_of(k) + half * 8192}"
    if K_K <= k < K_F2:
        so = (K_STREAM[k - K_K] if k < K_V else (k - K_V) * SLOT) + half * 8192
        return [m0, f"v_add_u32 v{vXA}, {so}, v{vKV}"] + ld2(SKV, k, vXA, vXA, "0" if k < K_V else f"s{sVOFF}", "sc1 ")
    src = hs_src(k, half)
    if src is None:
        return []
    srd_, kind, h, const = src
    base = {"w1": sW1Q, "w2": sW2Q, "wo": sWOQ}[kind]
    ops = [m0, f"s_add_u32 s{sDO}, s{sPAN+h}, s{base}"]
    if const:
        ops.append(f"s_add_u32 s{sDO}, s{sDO}, {const}")
    return ops + ld2(srd_, k)


def dma_sym(k):
    m0 = f"s_add_u32 m0, s{sW2K}, {slot_of(k)}"
    if k < K_F1:
        return [m0, f"s_add_u32 s{sDO}, s{sQB}, {k * 32 * 3456}"] + ld2(SQKV, k)
    if K_K <= k < K_F2:
        so = K_STREAM[k - K_K] if k < K_V else (k - K_V) * SLOT
        return [m0, f"s_lshl_b32 s{sDO}, s{sSB}, 13", f"s_add_u32 s{sDO}, s{sDO}, {so}", f"v_add_u32 v{vXA}, s{sDO}, v{vKV}"] + \
            ld2(SKV, k, vXA, vXA, "0" if k < K_V else f"s{sVOFF}", "sc1 ")
    s0, s1 = hs_src(k, 0), hs_src(k, 1)
    pre = []
    if k == K_F1:
        pre = voff_ops(9216)
    if k == K_F2:
        pre = voff_ops(1152, 238, 239)
    if s0[1] == s1[1]:
        assert s0[2] == s1[2]
        base = {"w1": sW1S, "w2": sW2S}[s0[1]]
        return pre + [m0, f"s_add_u32 s{sDO}, s{sPAN+s0[2]}, s{base}", f"s_add_u32 s{sDO}, s{sDO}, {s0[3]}"] + ld2(s0[0], k)
    assert s0[1] == "w2" and s1[1] == "wo" and s0[3] == 8 * 64 * 1152
    return [m0, f"s_add_u32 s{sDO}, s{sPAN+s0[2]}, s{sH4}"] + ld2(SD, k)


def ahead(k):
    return k + (PD1 if k < K_F2 else PD2)


FINE = {}


def top(a, k, ltag=None):
    a.wait(ltag=ltag, vtag=f"D{k+1}")
    a("s_barrier")


def lds_ref(b0, b1, addr):
    return (b0, addr) if addr < 65536 else (b1, addr - 65536)


def a_read_ops(buf, b0, b1, addr, estride, tag):
    v, o = lds_ref(b0, b1, addr)
    assert o + estride < 65536
    return [("l", f"ds_read_b64_tr_b16 {vr(buf,2)}, v{v} offset:{o}", tag),
            ("l", f"ds_read_b64_tr_b16 {vr(buf+2,2)}, v{v} offset:{o+estride}", tag)]


def gelu_ops(acc):
    C1 = f32(-2.0 * 1.4426950408889634 * 0.7978845608028654)
    ops = []
    for p in range(0, 16, 4):
        xs = [acc + p + i for i in range(4)]
        ts = [VT + i for i in range(4)]
        ops += [f"v_mul_f32 v{t}, v{x}, v{x}" for x, t in zip(xs, ts)]
        ops += [f"v_fmaak_f32 v{t}, v{t}, v{vC2}, {C1}" for t in ts]
        ops += [f"v_mul_f32 v{t}, v{x}, v{t}" for x, t in zip(xs, ts)]
        ops += [f"v_exp_f32 v{t}, v{t}" for t in ts]
        ops += [f"v_add_f32 v{t}, 1.0, v{t}" for t in ts]
        ops += [f"v_rcp_f32 v{t}, v{t}" for t in ts]
        ops += [f"v_mul_f32 v{t}, v{x}, v{t}" for x, t in zip(xs, ts)]
        ops += [f"v_cvt_pk_bf16_f32 v{acc+p//2}, v{ts[0]}, v{ts[1]}",
                f"v_cvt_pk_bf16_f32 v{acc+p//2+1}, v{ts[2]}, v{ts[3]}"]
    return ops


def bias_ops(acc, vaddr, off):
    return [("l", f"ds_read_b128 {vr(acc+4*c,4)}, v{vaddr} offset:{off+32*c}", "bias") for c in range(4)]


def hw_ops(acc, vaddr, off):
    return [("l", f"ds_write_b128 v{vaddr}, {vr(acc,4)} offset:{off}", "hw"),
            ("l", f"ds_write_b128 v{vaddr}, {vr(acc+4,4)} offset:{off+1024}", "hw")]


def pop(a, ops, n):
    for _ in range(n):
        if ops:
            a(ops.pop(0))


def w0_only(a, body):
    u = a.uid()
    a(f"s_cbranch_vccz L_w{u}")
    a(body)
    a(f"L_w{u}:")


DIST = 3


VF = 196


def poll_loop(a, load, ok_ops):
    u = a.uid()
    a(f"s_mov_b32 s{sT5}, 0\nL_p{u}:")
    a(ok_ops)
    a(f"""s_cbranch_scc1 L_pd{u}
          s_sleep 1""")
    a(load)
    a(f"""s_waitcnt vmcnt(0)
          s_add_u32 s{sT5}, s{sT5}, 1
          s_cmp_lt_u32 s{sT5}, 0x100000
          s_cbranch_scc1 L_p{u}
          L_pd{u}:""")


def non_load():
    return f"buffer_load_dword v{AXB+2}, off, {sr(SDBG,4)}, 0 sc1"


def kv_load():
    return f"buffer_load_dword v{AXB+2}, v{AXB+3}, {sr(SWS,4)}, 0 offen sc1"


def kv_ok():
    return f"""v_cmp_eq_u32 {sr(sM,2)}, s{sNON}, v{AXB+2}
          s_nop 1
          s_andn2_b32 s{sT0}, s{sT3}, s{sM}
          s_cmp_eq_u32 s{sT0}, 0"""


def fl_store_ops(h):
    return ["s_mov_b64 exec, 1",
            ("v", f"buffer_store_dword v{VF}, v{VF+2}, {sr(SWS,4)}, s{sKVF} offen offset:{256*h} sc1", f"f{h}"),
            "s_mov_b64 exec, -1"]


def pp_reads(k0, n, estride, h, s):
    i = n * h + s
    addr = slot_of(k0 + i // 8) + (i % 8) * 2048
    return a_read_ops(ABUF + 4 * (s % 4), vB0, vB1, addr, estride, f"a{h}_{s}")


def p3_ops():
    return f"""s_mul_i32 s{sT1}, s{sJ}, 576
          s_mul_i32 s{sT2}, s{sRK}, 36
          s_add_u32 s{sT1}, s{sT1}, s{sT2}
          s_mul_i32 s{sT1}, s{sT1}, 1152
          s_mul_i32 s{sT2}, s{sW}, {41*128}
          s_add_u32 s{sT1}, s{sT1}, s{sT2}
          v_lshlrev_b32 v{VT+6}, 7, v{vLANE}
          s_lshl_b32 s{sT2}, s{sRK}, 3
          s_add_u32 s{sT2}, s{sT2}, s{sW}
          s_mul_i32 s{sT2}, s{sT2}, {6*128}
          s_mul_i32 s{sT3}, s{sJ}, {72*1152}
          s_add_u32 s{sT2}, s{sT2}, s{sT3}
          s_mov_b32 exec_hi, 0x1ff
          buffer_load_dword v{VOB}, v{VT+6}, {sr(SW2,4)}, s{sT1} offen
          s_mov_b64 exec, 63
          buffer_load_dword v{VOB+1}, v{VT+6}, {sr(SWO,4)}, s{sT2} offen
          s_mov_b64 exec, -1"""


def qkv_epilogue(a, tag):
    a(f"""s_lshl_b32 s{sT5}, s{sJ}, 6
          s_lshl_b32 s{sT1}, s{sT}, 1
          s_add_u32 s{sT5}, s{sT5}, s{sT1}
          s_add_u32 s{sT5}, s{sT5}, s{sG}
          s_mul_i32 s{sT5}, s{sT5}, {TB}
          s_lshl_b32 s{sT4}, s{sG}, 9
          s_add_u32 s{sT4}, s{sT4}, {QXOFF}
          v_xor_b32 v{VT+7}, 1, v{vHALF}
""")
    if "p3mid" in ABL:
        a(p3_ops())
        a.vq += ["kv"] * 2
    a(f"""          s_cmp_eq_u32 s{sQ}, 1
          s_cbranch_scc1 L_ep1{tag}
          s_cmp_eq_u32 s{sQ}, 2
          s_cbranch_scc1 L_ep2{tag}
          s_cmp_eq_u32 s{sQ}, 3
          s_cbranch_scc1 L_ep3{tag}""")
    qk_scatter(a, 0, ACC[0])
    qk_scatter(a, 4, ACC[1])
    a(f"s_branch L_epd{tag}")
    for q in (1, 2, 3):
        a(f"L_ep{q}{tag}:")
        qk_scatter(a, q, ACC[0])
        if q < 3:
            a(f"s_branch L_epv{tag}")
    a(f"L_epv{tag}:")
    v_store(a, ACC[1])
    a(f"L_epd{tag}:")
    a.vq += ["kv"] * 2
    a.wait_lds_all()


def bias_pre(h):
    return [f"s_lshl_b32 s{sT2}, s{sPAN+h}, 1", f"v_add_u32 v{VT+6}, s{sT2}, v{vBA}"] + bias_ops(ACF, VT + 6, 0)


def ffn1(a, sb):
    tag = "AB"[sb]
    if sb == 0:
        a(bias_pre(0))
        for s in range(DIST):
            a(pp_reads(K_F1, 36, 512, 0, s))
    for h in range(9):
        comp = (h % 2) == sb
        ops = []
        if not comp and h > 0:
            ops = gelu_ops(ACF) + [f"s_lshl_b32 s{sT2}, s{sPAN+h-1}, 5", f"v_add_u32 v{VT+6}, s{sT2}, v{vHW}"] + hw_ops(ACF, VT + 6, 0)
        for s in range(36):
            i = 36 * h + s
            k = K_F1 + i // 8
            if i % 8 == 0:
                if h == 3 and s == 4:
                    a.wait(vtag="kv")
                    poll_loop(a, non_load(), f"v_readfirstlane_b32 s{sNON}, v{AXB+2}\ns_cmp_lg_u32 s{sNON}, 0")
                top(a, k, ltag=f"a{h}_{s}" if comp and s else None)
                if k == K_K - PD1 and sb == 1:
                    a(f"""s_sub_u32 s{sT2}, 4, s{sT}
                          s_max_i32 s{sT2}, s{sT2}, 0
                          s_lshl_b32 s{sT3}, 15, s{sT2}
                          s_and_b32 s{sT3}, s{sT3}, 15""")
                    a.wait(vtag="kvf")
                    poll_loop(a, kv_load(), kv_ok())
            if comp:
                if s == 0:
                    a.wait_lds("bias")
                a.wait_lds(f"a{h}_{s}")
                mfma(a, ACF, ABUF + 4 * (s % 4), VB + 4 * s)
                if s + DIST < 36:
                    a(pp_reads(K_F1, 36, 512, h, s + DIST))
            else:
                if s % 4 == 0:
                    d = dma_half(ahead(k), (i % 8) // 4)
                    if i + 4 >= 324:
                        d = d + dma_half(ahead(k), 1)
                    a(d[:-1])
                    last = d[-1:]
                    if s == 0 and ops:
                        a("s_nop 7\ns_nop 3")
                if s % 4 == 2:
                    a(last)
                if s >= 1:
                    pop(a, ops, 4)
                if s == 33:
                    assert not ops
                    if h <= 1:
                        qkv_epilogue(a, tag)
                    if h in (3, 4):
                        a(f"""s_lshl_b32 s{sT2}, s{sQ}, 10
                              s_add_u32 s{sT2}, s{sT2}, s{sSTG}
                              v_add_u32 v{VT+6}, s{sT2}, v{vL16}
                              s_lshl_b32 s{sT2}, s{sG}, 9
                              s_lshl_b32 s{sT3}, s{sQ}, 2
                              s_add_u32 s{sT2}, s{sT2}, s{sT3}
                              s_add_u32 s{sT2}, s{sT2}, {QXOFF}
                              v_add_u32 v{VT+7}, s{sT2}, v{vN16}""")
                        a.lds(f"ds_read_b128 {vr(VQ0,4)}, v{VT+6}", "q")
                        a.lds(f"ds_read_b32 v{VQ1}, v{VT+7}", "q")
                    if h < 8:
                        a(bias_pre(h + 1))
                if s == 35 and h == 3:
                    a(f"""v_mov_b32 v{AXB+2}, s{sNON}
                          s_lshl_b32 s{sT2}, s{sJ}, 5
                          s_add_u32 s{sT2}, s{sT2}, s{sT}
                          s_lshl_b32 s{sT2}, s{sT2}, 2
                          s_add_u32 s{sT2}, s{sT2}, {WS_KVF}
                          s_cmp_eq_u32 s{sW}, 0
                          s_cselect_b32 s{sT2}, s{sT2}, 0x7ff00000
                          v_mov_b32 v{AXB+3}, s{sT2}
                          s_mov_b64 exec, 1""")
                    a.vm(f"buffer_store_dword v{AXB+2}, v{AXB+3}, {sr(SWS,4)}, 0 offen sc1", "pub")
                    a("s_mov_b64 exec, -1")
                if s == 35 and h <= 1:
                    a.vm(non_load(), "kv")
                if s == 35 and h == 6:
                    a(f"""s_lshl_b32 s{sT2}, s{sJ}, 5
                          s_add_u32 s{sT2}, s{sT2}, s{sT}
                          s_lshl_b32 s{sT2}, s{sT2}, 2
                          s_add_u32 s{sT2}, s{sT2}, {WS_KVF - 16}
                          v_and_b32 v{AXB+3}, 3, v{vLANE}
                          v_lshl_add_u32 v{AXB+3}, v{AXB+3}, 2, s{sT2}""")
                    a.vm(kv_load(), "kvf")
                if s == 35 and h < 8:
                    for s2 in range(DIST):
                        a(pp_reads(K_F1, 36, 512, h + 1, s2))
        if h % 2 == 1:
            stamp(a, 16 + h // 2)
    if sb == 0:
        a(f"s_lshl_b32 s{sT2}, s{sPAN+8}, 5\nv_add_u32 v{VT+6}, s{sT2}, v{vHW}\ns_nop 7\ns_nop 1")
        a(gelu_ops(ACF))
        a(hw_ops(ACF, VT + 6, 0))
    a.wait_lds_all()


def ffn2_epi_ops(acc):
    ops = [f"v_cvt_pk_bf16_f32 v{acc+i}, v{acc+2*i}, v{acc+2*i+1}" for i in range(8)]
    ops += ["s_nop 0",
            f"v_permlane32_swap_b32 v{acc}, v{acc+2}",
            f"v_permlane32_swap_b32 v{acc+1}, v{acc+3}",
            f"v_permlane32_swap_b32 v{acc+4}, v{acc+6}",
            f"v_permlane32_swap_b32 v{acc+5}, v{acc+7}"]
    return ops


def part_store_ops(acc, h):
    return [f"s_lshl_b32 s{sT4}, s{sPAN+h}, 6",
            f"s_add_u32 s{sT4}, s{sT4}, s{sPB}",
            ("v", f"buffer_store_dwordx4 {vr(acc,4)}, v{vL16}, {sr(SWS,4)}, s{sT4} offen sc1", f"p{h}"),
            ("v", f"buffer_store_dwordx4 {vr(acc+4,4)}, v{vL16}, {sr(SWS,4)}, s{sT4} offen offset:1024 sc1", f"p{h}")]


def reduce_block(a, hreg_ops, hook=None):
    X, Bq, PR, AC = 16, 20, 32, 64
    vXO, vBO = 24, 25
    s_row, s_col, s_p, s_f = sQB, sW1Q, sW1S, sH4
    a(hreg_ops)
    a(f"""s_lshl_b32 s{s_f}, s{sT2}, 8
          s_add_u32 s{s_f}, s{s_f}, s{sSTG}
          s_lshr_b32 s{sT1}, s{sPAN}, 7
          s_add_u32 s{sT2}, s{sT2}, s{sT1}
          s_sub_u32 s{sT1}, s{sT2}, 9
          s_cmp_ge_u32 s{sT2}, 9
          s_cselect_b32 s{sT2}, s{sT1}, s{sT2}
          s_lshl_b32 s{sT2}, s{sT2}, 3
          s_add_u32 s{sT2}, s{sT2}, s{sJ}
          buffer_load_dword v{VF+4}, v{VF+3}, {sr(SWS,4)}, s{s_f} offen sc1
          s_bfe_u32 s{s_row}, s{sT2}, 0x10001
          s_lshl_b32 s{sT0}, s{sT}, 1
          s_add_u32 s{s_row}, s{s_row}, s{sT0}
          s_mul_i32 s{s_row}, s{s_row}, {32*1152}
          s_lshr_b32 s{s_col}, s{sT2}, 2
          s_lshl_b32 s{s_col}, s{s_col}, 6
          s_and_b32 s{sT0}, s{sT2}, 1
          s_lshl_b32 s{sT0}, s{sT0}, 5
          s_add_u32 s{s_col}, s{s_col}, s{sT0}
          s_add_u32 s{s_row}, s{s_row}, s{s_col}
          s_mul_i32 s{sT0}, s{sT}, 73728
          s_lshl_b32 s{s_p}, s{sT2}, 10
          s_add_u32 s{s_p}, s{s_p}, s{sT0}
          s_add_u32 s{s_p}, s{s_p}, {WS_PART}
          v_mul_u32_u24 v{vXO}, 1152, v{vN}
          v_lshl_add_u32 v{vXO}, v{vHALF}, 4, v{vXO}
          v_lshlrev_b32 v{vBO}, 4, v{vHALF}
          buffer_load_dwordx4 {vr(X,4)}, v{vXO}, {sr(SX,4)}, s{s_row} offen
          buffer_load_dwordx4 {vr(Bq,4)}, v{vBO}, {sr(SB,4)}, s{s_col} offen
          s_waitcnt vmcnt(2)""")
    if hook:
        a(hook)
    poll_loop(a, f"buffer_load_dword v{VF+4}, v{VF+3}, {sr(SWS,4)}, s{s_f} offen sc1",
              f"v_cmp_eq_u32 {sr(sM,2)}, v{VF+4}, v{VF}\ns_nop 1\ns_cmp_eq_u64 {sr(sM,2)}, -1")
    for jj in range(8):
        a(f"buffer_load_dwordx4 {vr(PR+4*jj,4)}, v{vL16}, {sr(SWS,4)}, s{s_p} offen sc1")
        if jj < 7:
            a(f"s_add_u32 s{s_p}, s{s_p}, {32*73728}")

    def unpack_add(src, first):
        for r in range(4):
            if first:
                a(f"v_lshlrev_b32 v{AC+2*r}, 16, v{src+r}\nv_and_b32 v{AC+2*r+1}, 0xffff0000, v{src+r}")
            else:
                t = VT + 2 * (r % 2)
                a(f"""v_lshlrev_b32 v{t}, 16, v{src+r}
                      v_and_b32 v{t+1}, 0xffff0000, v{src+r}
                      v_add_f32 v{AC+2*r}, v{AC+2*r}, v{t}
                      v_add_f32 v{AC+2*r+1}, v{AC+2*r+1}, v{t+1}""")
    a("s_waitcnt vmcnt(8)")
    unpack_add(X, True)
    unpack_add(Bq, False)
    for jj in range(8):
        a(f"s_waitcnt vmcnt({7-jj})")
        unpack_add(PR + 4 * jj, False)
    for r in range(4):
        a(f"v_cvt_pk_bf16_f32 v{X+r}, v{AC+2*r}, v{AC+2*r+1}")
    a(f"buffer_store_dwordx4 {vr(X,4)}, v{vXO}, {sr(SOUT,4)}, s{s_row} offen\ns_nop 1")


def ffn2(a, sb):
    def bfrag(s):
        return VB + 4 * s if s < 36 else VOB + 4 * (s - 36)

    if sb == 0:
        for s in range(DIST):
            a(pp_reads(K_F2, 40, 1024, 0, s))
    for h in range(9):
        comp = (h % 2) == sb
        if h == 8 and sb == 1:
            break
        ops = []
        late = []
        if not comp and h > 0:
            ops = ffn2_epi_ops(ACF)
            late = part_store_ops(ACF, h - 1)
        late_at = max([s for s in range(0, 40, 4) if dma_half(ahead(K_F2 + (40 * h + s) // 8), 0)] + [4]) + 3
        for s in range(40):
            i = 40 * h + s
            k = K_F2 + i // 8
            if i % 8 == 0 and k + 1 < K_END and h < 8:
                top(a, k, ltag=f"a{h}_{s}" if comp else None)
            if comp:
                a.wait_lds(f"a{h}_{s}")
                mfma(a, ACF, ABUF + 4 * (s % 4), bfrag(s), "0" if s == 0 else None)
                if s == 1:
                    a(f"s_lshl_b32 s{sT2}, s{sPAN+h}, 3\nv_add_u32 v{VT+6}, s{sT2}, v{vBA}")
                if s == 35:
                    a(a_read_ops(AXB, VT + 6, VT + 6, 0, 256, "ax"))
                if h == 8 and s == 20:
                    a.wait(vtag="p6")
                    a(fl_store_ops(6))
                if s + DIST < 40:
                    a(pp_reads(K_F2, 40, 1024, h, s + DIST))
                if s == 39:
                    a.wait_lds("ax")
                    mfma(a, ACF, AXB, VOB + 16)
            else:
                if s % 4 == 0:
                    d = dma_half(ahead(k), (i % 8) // 4)
                    a(d[:-1])
                    last = d[-1:]
                    if s == 0 and ops:
                        a("s_nop 7\ns_nop 3")
                if s % 4 == 2:
                    a(last)
                if s >= 2:
                    pop(a, ops, 3)
                if s == late_at:
                    assert not ops
                    if h >= 3:
                        a.wait(vtag=f"p{h-3}")
                        a(fl_store_ops(h - 3))
                    a(late)
                if s == 39 and h < 8:
                    for s2 in range(DIST):
                        a(pp_reads(K_F2, 40, 1024, h + 1, s2))
        if h == 7:
            a.wait(vtag=f"D{K_END-1}")
            a.wait(vtag=f"D{K_END-4}")
            a("s_barrier")
            rstamp(a, 0)
        if h % 2 == 1:
            stamp(a, 21 + h // 2)
    a("s_nop 7\ns_nop 3")
    a(ffn2_epi_ops(ACF))
    hl = 8 - sb
    a(part_store_ops(ACF, hl))
    stamp(a, 25)
    if sb == 1:
        a.wait(vtag="p5")
        a(fl_store_ops(5))
        reduce_block(a, f"s_mov_b32 s{sT2}, s{sQ}", fl_store_ops(7))
        rstamp(a, 4)
        reduce_block(a, f"s_add_u32 s{sT2}, s{sQ}, 4")
        rstamp(a, 5)
    else:
        a(f"s_cmp_eq_u32 s{sQ}, 0\ns_cbranch_scc1 L_f2_r8\ns_waitcnt vmcnt(0)")
        a(fl_store_ops(8))
        a("s_branch L_f2_done\nL_f2_r8:")
        reduce_block(a, f"s_mov_b32 s{sT2}, 8", fl_store_ops(8))
    stamp(a, 9)


QKV_MASK2 = 0
for _l in range(64):
    _t, _pc = _l // 16, _l % 4
    if (_t == 0 and _pc < 2) or _t in (1, 2) or (_t == 3 and _pc == 0):
        QKV_MASK2 |= 1 << _l


def qkv_reads(s, second):
    if s >= 36:
        return []
    addr = slot_of(s // 2) + (s % 2) * 8192 + (1024 if second else 0)
    return a_read_ops((ABUF2 if second else ABUF) + 4 * (s % 4), vB0, vB1, addr, 2048, f"{'b' if second else 'a'}{s}")


def qkv_body(a, swapped):
    acc0, acc1 = ACC
    for s in range(36):
        k = s // 2
        c = "0" if s == 0 else None
        if s % 2 == 0:
            top(a, k, ltag=f"a{s}")
            d = dma_sym(ahead(k))
            d = (d[:-1], d[-1:])
        a.wait_lds(f"a{s}")
        mfma(a, acc0, ABUF + 4 * (s % 4), VB + 4 * s, c)
        a(qkv_reads(s + 2, False))
        if s % 2 == 1:
            a(d[1])
        a.wait_lds(f"b{s}")
        if swapped:
            mfma(a, acc1, VB + 4 * s, ABUF2 + 4 * (s % 4), c)
        else:
            mfma(a, acc1, ABUF2 + 4 * (s % 4), VB + 4 * s, c)
        a(qkv_reads(s + 2, True))
        if s % 2 == 0:
            a(d[0])


def granule_dest(G):
    if G >= 36:
        return None
    part, gg = divmod(G, 18)
    pair, r = divmod(gg, 9)
    if r == 4:
        return part, 4096 + pair * 8
    head, gm = (2 * pair, r) if r < 4 else (2 * pair + 1, r - 5)
    return part, head * 1024 + (gm >> 1) * 512 + (gm & 1) * 8


def qk_scatter(a, T, acc):
    for c in range(4):
        d0, d1 = granule_dest(8 * T + 2 * c), granule_dest(8 * T + 2 * c + 1)
        if d0 is None:
            continue
        assert d0[0] == d1[0]
        a(f"""v_cvt_pk_bf16_f32 v{acc+4*c}, v{acc+4*c}, v{acc+4*c+1}
              v_cvt_pk_bf16_f32 v{acc+4*c+1}, v{acc+4*c+2}, v{acc+4*c+3}""")
        if d0[0] == 1:
            lo = min(d0[1], d1[1])
            t = VT + c
            if d1[1] >= d0[1]:
                a(f"s_mov_b32 s{sT1}, {d1[1]-d0[1]}\nv_mad_u32_u24 v{t}, v{vHALF}, s{sT1}, v{vN16}")
            else:
                a(f"s_mov_b32 s{sT1}, {d0[1]-d1[1]}\nv_mad_u32_u24 v{t}, v{VT+7}, s{sT1}, v{vN16}")
            a(f"""s_add_u32 s{sT1}, s{sT5}, {lo}
                  buffer_store_dwordx2 {vr(acc+4*c,2)}, v{t}, {sr(SWS,4)}, s{sT1} offen sc1""")
        else:
            def ldsoff(o):
                return ("m", o) if o < 4096 else ("x", o - 4096)
            (k0, o0), (k1, o1) = ldsoff(d0[1]), ldsoff(d1[1])
            base = {"m": sSTG, "x": sT4}
            t = VT + c
            a(f"""s_add_u32 s{sT1}, s{base[k0]}, {o0}
                  s_add_u32 s{sT2}, s{base[k1]}, {o1}
                  s_sub_u32 s{sT2}, s{sT2}, s{sT1}
                  v_mul_lo_u32 v{t}, v{vHALF}, s{sT2}
                  v_add3_u32 v{t}, v{t}, v{vN16}, s{sT1}
                  ds_write_b64 v{t}, {vr(acc+4*c,2)}""")


def v_store(a, acc):
    t0, t1, t2 = VT, VT + 1, VT + 2
    for i in range(8):
        a(f"v_cvt_pk_bf16_f32 v{acc+i}, v{acc+2*i}, v{acc+2*i+1}")
    a(f"""s_sub_u32 s{sT1}, s{sQ}, 1
          s_lshl_b32 s{sT1}, s{sT1}, 5
          v_add_u32 v{t0}, s{sT1}, v{vN}
          v_mul_u32_u24 v{t1}, 57, v{t0}
          v_lshrrev_b32 v{t1}, 10, v{t1}
          v_mul_u32_u24 v{t2}, 54, v{t1}
          v_add_u32 v{t2}, v{t0}, v{t2}
          v_mad_u32_u24 v{t2}, v{vHALF}, 18, v{t2}
          v_lshlrev_b32 v{t2}, 4, v{t2}
          v_cmp_lt_u32 {sr(sM,2)}, 3, v{t1}
          v_mov_b32 v{t1}, 0x7fffff00
          s_add_u32 s{sT1}, s{sT5}, {WS_V - WS_K}
          v_cndmask_b32 v{t2}, v{t2}, v{t1}, {sr(sM,2)}
          buffer_store_dwordx4 {vr(acc,4)}, v{t2}, {sr(SWS,4)}, s{sT1} offen sc1
          buffer_store_dwordx4 {vr(acc+4,4)}, v{t2}, {sr(SWS,4)}, s{sT1} offen offset:576 sc1""")


def attention(a):
    S = lambda u: 16 + 16 * u
    KB = [212, 216, 220, 224]
    KF = (240, 244)
    VQ = [160, 164, 168, 172, 176, 180, 184, 188, 192, 196, 200, 204, 208,
          212, 216, 220, 224, 244]
    V = lambda u, x: VQ[2 * u + x]
    P = lambda u: S(u) if u != 1 else S(0) + 8
    OA = S(1)
    vKa, vKb, vKc, vXa, vXb, vXc = vB0, vB1, vHW, vBA, vC2, 238
    vM = VT + 1
    ONES = "0x3f803f80"
    NEGB = 0xff7f
    S4, S0, S2 = 4 * SLOT, 0, 2 * SLOT
    a(f"""s_mul_i32 s{sT2}, s{sG}, {TB}
          s_lshl_b32 s{sT3}, s{sQ}, 10
          s_add_u32 s{sT3}, s{sT3}, s{sT2}
          v_add_u32 v{vKb}, s{sT3}, v{vL16}
          v_add_u32 v{vKa}, {S4}, v{vKb}
          s_lshl_b32 s{sT3}, s{sQ}, 2
          s_add_u32 s{sT3}, s{sT3}, s{sT2}
          s_add_u32 s{sT3}, s{sT3}, 4096
          v_add_u32 v{vXb}, s{sT3}, v{vN16}
          v_add_u32 v{vXa}, {S4}, v{vXb}
          s_mov_b32 s{sT3}, {-TB & 0xffffffff}
          s_cmp_eq_u32 s{sG}, 0
          s_cselect_b32 s{sT3}, {S4 + 2*TB}, s{sT3}
          v_add_u32 v{vKc}, s{sT3}, v{vKb}
          v_add_u32 v{vXc}, s{sT3}, v{vXb}
          s_lshl_b32 s{sT5}, s{sT}, 1
          s_add_u32 s{sT5}, s{sT5}, s{sG}
          s_sub_u32 s{sT5}, s{sT5}, 8""")

    def kaddr(u):
        if u < 2:
            return vKa, vXa, u * TB
        if u == 2:
            return vKc, vXc, 0
        return vKb, vXb, (u - 3) * TB

    def kread(u):
        vk, vx, off = kaddr(u)
        a.lds(f"ds_read_b128 {vr(KB[u%4],4)}, v{vk} offset:{off}", f"k{u}")
        a.lds(f"ds_read_b32 v{VT+4+u%4}, v{vx} offset:{off}", f"k{u}")

    def qk(u):
        kf = KF[u % 2]
        a(f"""s_add_i32 s{sT0}, s{sT5}, {u}
              s_cmp_lt_i32 s{sT0}, 0
              s_cselect_b32 s{sT0}, {NEGB}, 0""")
        a.wait_lds(f"k{u}")
        a(f"v_mov_b32 v{kf}, v{VT+4+u%4}\nv_mov_b32 v{kf+1}, s{sT0}")
        mfma(a, S(u), KB[u % 4], VQ0, None if u in (0, 8) else "0")
        a("s_nop 0")
        mfma(a, S(u), kf, VQ1)

    setup = []
    for kf in KF:
        setup += [f"v_mov_b32 v{kf+2}, 0", f"v_mov_b32 v{kf+3}, 0"]
    setup += lines(f"""v_mov_b32 v{VQ1+2}, 0
          v_mov_b32 v{VQ1+3}, 0
          v_cmp_eq_u32 {sr(sM,2)}, 0, v{vHALF}
          v_mov_b32 v{vM}, 0x3f80
          v_lshlrev_b32 v{VT+2}, 2, v{vHALF}
          v_cndmask_b32 v{VQ1+1}, 0, v{vM}, {sr(sM,2)}
          v_cndmask_b32 v{VQ1}, 0, v{VQ1}, {sr(sM,2)}
          v_sub_u32 v{VT+2}, v{vN}, v{VT+2}
          v_mov_b32 v{VT+3}, {f32(-1e30)}""")
    for r in range(16):
        cr = 8 * (r // 4) + r % 4
        setup += lines(f"""v_cmp_le_i32 {sr(sM,2)}, {cr}, v{VT+2}
              s_nop 1
              v_cndmask_b32 v{S(8)+r}, v{VT+3}, 0, {sr(sM,2)}
              v_cndmask_b32 v{S(0)+r}, 0, v{VT+3}, {sr(sM,2)}""")
    a(setup)
    plan = [[0, 1, 2], [3, 4, 5, 6], [7, 8]]
    for st in range(3):
        top(a, K_K + st)
        for u in plan[st]:
            kread(u)
        a(dma_sym(ahead(K_K + st)))
        for u in plan[st]:
            qk(u)
    a(f"""s_mul_i32 s{sT2}, s{sG}, {TB}
          s_mul_i32 s{sT3}, s{sQ}, 1152
          s_add_u32 s{sT2}, s{sT2}, s{sT3}
          s_add_u32 s{sT2}, s{sT2}, {S2}
          v_mad_u32_u24 v{vKa}, v{vHALF}, 18, v{vN}
          v_lshl_add_u32 v{vKa}, v{vKa}, 4, s{sT2}
          v_cmp_gt_u32 {sr(sM,2)}, 18, v{vN}""")
    for qd in VQ:
        for r in range(4):
            a(f"v_mov_b32 v{qd+r}, {ONES}")
    vplan = [[0, 1, 2, 3], [4, 5, 6, 7], [8]]
    mx = []
    regs = list(range(S(0), S(8) + 16))
    mx.append(f"v_max3_f32 v{vM}, v{regs[0]}, v{regs[1]}, v{regs[2]}")
    mx.append(f"v_max3_f32 v{VT+2}, v{regs[3]}, v{regs[4]}, v{regs[5]}")
    regs = regs[6:]
    k = 0
    while regs:
        dd = vM if k % 2 == 0 else VT + 2
        mx.append(f"v_max3_f32 v{dd}, v{dd}, v{regs[0]}, v{regs[1]}")
        regs = regs[2:]
        k += 1
    for st in range(3):
        if st > 0:
            a.wait_lds_all()
        top(a, K_V + st)
        a(f"s_mov_b64 exec, {sr(sM,2)}")
        for u in vplan[st]:
            for x in range(2):
                a.lds(f"ds_read_b128 {vr(V(u,x),4)}, v{vKa} offset:{u*TB + x*576}", "v")
        a("s_mov_b64 exec, -1")
        a(dma_sym(ahead(K_V + st)))
        pop(a, mx, 24)
    a(mx)
    a(f"""v_max_f32 v{vM}, v{vM}, v{VT+2}
          v_mov_b32 v{VT+2}, v{vM}
          s_nop 1
          v_permlane32_swap_b32 v{vM}, v{VT+2}
          v_max_f32 v{vM}, v{vM}, v{VT+2}
          v_mul_f32 v{vM}, s{sC}, v{vM}""")
    a.wait_lds_all()
    stamp(a, 6)
    pend = []
    for u in range(9):
        for r in range(16):
            a(f"v_fma_f32 v{S(u)+r}, v{S(u)+r}, s{sC}, -v{vM}")
            if r in (3, 11) and pend:
                pend.pop(0)()
        for r in range(16):
            a(f"v_exp_f32 v{S(u)+r}, v{S(u)+r}")
            if r in (3, 11) and pend:
                pend.pop(0)()
        for r in range(8):
            a(f"v_cvt_pk_bf16_f32 v{P(u)+r}, v{S(u)+2*r}, v{S(u)+2*r+1}")
        if u >= 1:
            us = [0, 1] if u == 1 else [u]
            for uu in us:
                pend.append(lambda uu=uu: mfma(a, OA, V(uu, 0), P(uu), "0" if uu == 0 else None))
                pend.append(lambda uu=uu: mfma(a, OA, V(uu, 1), P(uu) + 4))
    a("s_nop 1")
    while pend:
        pend.pop(0)()
    a(f"""s_nop 15
          v_rcp_f32 v{vM}, v{OA+10}
          v_cmp_eq_u32 {sr(sM,2)}, 0, v{vHALF}""")
    for r in range(10):
        a(f"v_mul_f32 v{OA+r}, v{OA+r}, v{vM}")
    for r in range(5):
        a(f"v_cvt_pk_bf16_f32 v{VT+r}, v{OA+2*r}, v{OA+2*r+1}")
    a(f"v_cndmask_b32 v{VT+4}, 0, v{VT+4}, {sr(sM,2)}")


def main_kernel(a):
    a("s_cmp_ge_u32 s2, 256\ns_cbranch_scc1 L_main_end")
    stamp(a, 0)
    a(f"""s_load_dwordx16 {sr(4,16)}, s[0:1], 0
          s_load_dwordx4 {sr(20,4)}, s[0:1], 64
          s_load_dwordx2 {sr(24,2)}, s[0:1], 80
          s_memrealtime {sr(sNON,2)}
          v_and_b32 v{vLANE}, 63, v0
          v_lshrrev_b32 v{VT}, 6, v0
          v_and_b32 v{vN}, 31, v0
          v_readfirstlane_b32 s{sW}, v{VT}
          v_bfe_u32 v{vHALF}, v0, 5, 1
          v_lshlrev_b32 v{vL16}, 4, v{vLANE}
          v_lshlrev_b32 v{vN16}, 4, v{vN}
          s_and_b32 s{sJ}, s2, 3
          s_lshl_b32 s{sJ}, s{sJ}, 1
          s_bfe_u32 s{sT1}, s2, 0x10003
          s_add_u32 s{sJ}, s{sJ}, s{sT1}
          s_lshr_b32 s{sT}, s2, 4
          s_bfe_u32 s{sT1}, s2, 0x10002
          s_lshl_b32 s{sT1}, s{sT1}, 4
          s_add_u32 s{sT}, s{sT}, s{sT1}
          s_and_b32 s{sQ}, s{sW}, 3
          s_lshr_b32 s{sG}, s{sW}, 2
          v_lshrrev_b32 v{VT}, 3, v{vLANE}
          v_mul_u32_u24 v{VT}, 1152, v{VT}
          v_and_b32 v{VT+1}, 7, v{vLANE}
          v_lshl_add_u32 v{VT}, v{VT+1}, 4, v{VT}
          s_lshl_b32 s{sT1}, s{sT}, 3
          s_add_u32 s{sT1}, s{sT1}, s{sW}
          s_mul_i32 s{sT1}, s{sT1}, {8*1152}
          s_waitcnt lgkmcnt(0)""")
    srd(a, SX, P_X, 2048 * 576 * 2)
    XR, XF = 16, 64
    for i in range(9):
        a.vm(f"buffer_load_dwordx4 {vr(XR+4*i,4)}, v{VT}, {sr(SX,4)}, s{sT1} offen offset:{128*i}", "x")
    if STAMPS:
        a(f"v_writelane_b32 v{VT+6}, s{sNON}, 0")
    srd(a, SD, P_DBG, 256)
    a(f"""s_or_b32 s{sNON}, s{sNON}, 1
          v_mov_b32 v{VT+4}, s{sNON}
          s_or_b32 s{sT2}, s{sW}, s2
          s_cselect_b32 s{sT2}, 0x1000, 0
          v_mov_b32 v{VT+5}, s{sT2}
          s_mov_b64 exec, 1""")
    a.vm(f"buffer_store_dword v{VT+4}, v{VT+5}, {sr(SD,4)}, 0 offen sc1", "ns")
    a("s_mov_b64 exec, -1")
    if "nocodepf" not in ABL:
        a(f"""s_getpc_b64 {sr(SKV,2)}
              L_pc:
              s_and_b32 s{SKV+1}, s{SKV+1}, 0xffff
              s_mov_b32 s{SKV+2}, L_code_end - L_pc
              s_mov_b32 s{SKV+3}, 0x20000
              s_bfe_u32 s{sT2}, s2, 0x30003
              s_lshl_b32 s{sT2}, s{sT2}, 13
              s_cmp_eq_u32 s{sW}, 7
              s_cselect_b32 s{sT2}, s{sT2}, 0x100000
              v_lshlrev_b32 v{VT+4}, 7, v{vLANE}""")
        a.vm(f"buffer_load_dword v{VOB+2}, v{VT+4}, {sr(SKV,4)}, s{sT2} offen", "cpf")
    srd(a, SB1, P_B1, 4608 * 2)
    a(f"""v_lshlrev_b32 v{VT+2}, 2, v0
          s_mul_i32 s{sT1}, s{sJ}, 1152""")
    a.vm(f"buffer_load_dword v{AXB+2}, v{VT+2}, {sr(SB1,4)}, s{sT1} offen", "b1")
    srd(a, SQKV, P_WQKV, 576 * 1728 * 2)
    srd(a, SWO, P_WO, 576 * 576 * 2)
    srd(a, SW1, P_W1, 576 * 4608 * 2)
    srd(a, SW2, P_W2, 4608 * 576 * 2)
    srd(a, SWS, P_WS, WS_BYTES)
    srd(a, SOUT, P_OUT, 2048 * 576 * 2)
    srd(a, SB, P_B2, 576 * 2)
    a(f"""s_mul_i32 s{sT1}, s{sJ}, {64*TB}
          s_add_u32 s{SKV}, s{P_WS}, s{sT1}
          s_addc_u32 s{SKV+1}, s{P_WS+1}, 0
          s_and_b32 s{SKV+1}, s{SKV+1}, 0xffff
          s_mov_b32 s{SKV+2}, {8 << 20}
          s_mov_b32 s{SKV+3}, 0x20000
          v_bfe_u32 v{VT}, v{vLANE}, 2, 2
          v_lshlrev_b32 v{vINB}, 6, v{VT}
          v_bfe_u32 v{VT+1}, v{vLANE}, 4, 1
          v_lshl_add_u32 v{vINB}, v{VT+1}, 5, v{vINB}
          v_and_b32 v{VT+4}, 3, v{vLANE}
          v_lshl_add_u32 v{vINB}, v{VT+4}, 3, v{vINB}
          v_mul_u32_u24 v{VT}, 3456, v{VT}
          v_lshrrev_b32 v{VT+1}, 4, v{vLANE}
          v_lshl_add_u32 v{VT+1}, v{VT+1}, 2, v{VT+4}
          v_lshl_add_u32 v{VT}, v{VT+1}, 4, v{VT}
          v_cmp_lt_u32 vcc, 8, v{VT+1}
          v_mov_b32 v{VT+4}, {1152-144}
          v_mov_b32 v{VT+5}, {2304-64-1024}
          v_cndmask_b32 v{VT+4}, 0, v{VT+4}, vcc
          v_add_u32 v{vDV}, v{VT}, v{VT+4}
          v_cmp_lt_u32 vcc, 3, v{VT+1}
          v_mov_b32 v{VT+4}, {1152+112-1024}
          s_mov_b32 s{sVOFF}, {WS_V - WS_K}
          v_cndmask_b32 v{VT+4}, v{VT+4}, v{VT+5}, vcc
          v_add_u32 v{vDVb}, v{VT}, v{VT+4}
          s_mov_b32 vcc_lo, {QKV_MASK2 & 0xffffffff}
          s_mov_b32 vcc_hi, {QKV_MASK2 >> 32}
          v_mov_b32 v{VT+4}, 0x40000000
          v_cndmask_b32 v{vDVb}, v{VT+4}, v{vDVb}, vcc
          s_and_b32 s{sSB}, s{sQ}, 1
          s_xor_b32 s{sSB}, s{sSB}, s{sG}
          s_lshl_b32 s{sT2}, s{sSB}, 2
          s_add_u32 s{sT2}, s{sT2}, s{sQ}
          s_lshl_b32 s{sW2K}, s{sT2}, 11
          s_lshl_b32 s{sQ2K}, s{sQ}, 11
          s_mul_i32 s{sHB}, s{sG}, {HG}
          s_add_u32 s{sHB}, s{sHB}, {HOFF}
          s_mul_i32 s{sQB}, s{sT2}, {4*3456}
          s_mul_i32 s{sT1}, s{sJ}, 144
          s_add_u32 s{sQB}, s{sQB}, s{sT1}
          s_barrier""")
    for k in range(PD1):
        a(dma_sym(k))
    a(f"""s_and_b32 s{sRK}, s{sT}, 15
          s_mul_i32 s{sT1}, s{sT}, 57
          s_lshr_b32 s{sT1}, s{sT1}, 9
          s_mul_i32 s{sT1}, s{sT1}, 9
          s_sub_u32 s{sT1}, s{sT}, s{sT1}
          s_lshl_b32 s{sPAN}, s{sT1}, 7""")
    for h in range(1, 9):
        a(f"""s_add_u32 s{sPAN+h}, s{sPAN+h-1}, 128
              s_cmp_eq_u32 s{sPAN+h}, 1152
              s_cselect_b32 s{sPAN+h}, 0, s{sPAN+h}""")
    a(f"""s_lshl_b32 s{sSTG}, s{sPAN+8}, 5
          s_add_u32 s{sSTG}, s{sSTG}, s{sHB}
          s_mul_i32 s{sT2}, s{sQ}, {16*9216}
          s_mul_i32 s{sT1}, s{sJ}, 1152
          s_add_u32 s{sW1Q}, s{sT2}, s{sT1}
          s_mul_i32 s{sT2}, s{sSB}, {64*9216}
          s_add_u32 s{sW1S}, s{sW1Q}, s{sT2}
          s_mul_i32 s{sT2}, s{sQ}, {16*1152}
          s_mul_i32 s{sT1}, s{sJ}, {576*1152}
          s_add_u32 s{sW2Q}, s{sT2}, s{sT1}
          s_mul_i32 s{sT2}, s{sSB}, {64*1152}
          s_add_u32 s{sW2S}, s{sW2Q}, s{sT2}
          s_mul_i32 s{sT2}, s{sJ}, 72
          s_mul_i32 s{sT1}, s{sQ}, 18
          s_add_u32 s{sT1}, s{sT1}, s{sT2}
          s_mul_i32 s{sWOQ}, s{sT1}, 1152
          s_add_u32 s{sT2}, s{sW2Q}, {512*1152}
          s_cmp_lg_u32 s{sSB}, 0
          s_cselect_b32 s{sH4}, s{sWOQ}, s{sT2}
          s_cselect_b64 {sr(SD,2)}, {sr(SWO,2)}, {sr(SW2,2)}
          s_cselect_b32 s{SD+2}, s{SWO+2}, s{SW2+2}
          s_mov_b32 s{SD+3}, 0x20000
          s_lshl_b32 s{sT1}, s{sJ}, 5
          s_add_u32 s{sT1}, s{sT1}, s{sT}
          s_mul_i32 s{sPB}, s{sT1}, 73728
          s_lshl_b32 s{sT1}, s{sG}, 11
          s_add_u32 s{sPB}, s{sPB}, s{sT1}
          s_lshr_b32 s{sT1}, s{sQ}, 1
          s_lshl_b32 s{sT1}, s{sT1}, 12
          s_add_u32 s{sPB}, s{sPB}, s{sT1}
          s_add_u32 s{sPB}, s{sPB}, {WS_PART}
          s_lshl_b32 s{sT2}, s{sT}, 1
          s_sub_u32 s{sT2}, s{sT2}, 8
          s_mul_i32 s{sT2}, s{sT2}, {TB}
          s_add_u32 s{sT2}, s{sT2}, s{sQ2K}
          v_add_u32 v{vKV}, s{sT2}, v{vL16}
          s_mov_b32 s{sC}, {f32(18 ** -0.5 * 1.4426950408889634)}
          v_mov_b32 v{vC2}, {f32(-2.0 * 1.4426950408889634 * 0.7978845608028654 * 0.044715)}""")
    PF = AXB
    a(f"""s_mul_i32 s{sT1}, s{sW}, 27
          v_add_u32 v{VT}, s{sT1}, v{vLANE}
          v_mul_u32_u24 v{VT+1}, 171, v{VT}
          v_lshrrev_b32 v{VT+1}, 10, v{VT+1}
          v_mul_u32_u24 v{VT+4}, 6, v{VT+1}
          v_sub_u32 v{VT+4}, v{VT}, v{VT+4}
          v_mul_u32_u24 v{VT+1}, 3456, v{VT+1}
          v_lshrrev_b32 v{VT+5}, 1, v{VT+4}
          v_mul_u32_u24 v{VT+5}, 1152, v{VT+5}
          v_and_b32 v{VT+4}, 1, v{VT+4}
          v_mul_u32_u24 v{VT+4}, 140, v{VT+4}
          v_add3_u32 v{VT+1}, v{VT+1}, v{VT+4}, v{VT+5}
          s_mul_i32 s{sT1}, s{sRK}, {36*3456}
          s_mul_i32 s{sT2}, s{sJ}, 144
          s_add_u32 s{sT1}, s{sT1}, s{sT2}
          s_mov_b64 exec, 0x7ffffff""")
    a.vm(f"buffer_load_dword v{PF}, v{VT+1}, {sr(SQKV,4)}, s{sT1} offen", "pf")
    a(f"""s_mov_b64 exec, -1
          s_mul_i32 s{sT1}, s{sW}, 41
          v_add_u32 v{VT}, s{sT1}, v{vLANE}
          v_mul_u32_u24 v{VT+1}, 911, v{VT}
          v_lshrrev_b32 v{VT+1}, 13, v{VT+1}
          v_mul_u32_u24 v{VT+1}, {9216 - 1152}, v{VT+1}
          v_lshl_add_u32 v{VT+1}, v{VT}, 7, v{VT+1}
          s_mul_i32 s{sT1}, s{sRK}, {36*9216}
          s_mul_i32 s{sT2}, s{sJ}, 1152
          s_add_u32 s{sT1}, s{sT1}, s{sT2}""")
    a.wait(vtag="x")
    a("s_mov_b32 exec_hi, 0x1ff")
    a.vm(f"buffer_load_dword v{PF+1}, v{VT+1}, {sr(SW1,4)}, s{sT1} offen", "pf")
    a(f"""s_mov_b64 exec, -1
          v_lshlrev_b32 v{AXB+3}, 3, v0""")
    if "p3early" in ABL:
        a(p3_ops().replace(f"v{VT+6}", f"v{VT+7}"))
        a.vq += ["pf"] * 2
    if STAMPS:
        a(f"v_readlane_b32 s{sT2}, v{VT+6}, 0\ns_nop 3\nv_writelane_b32 v0, s{sT2}, 30")
    stamp(a, 1)
    for i in range(36):
        a(f"v_lshlrev_b32 v{XF+2*i}, 16, v{XR+i}\nv_and_b32 v{XF+2*i+1}, 0xffff0000, v{XR+i}")
    A0, A1 = VT, VT + 2

    def rowsum(dst):
        a(f"""v_pk_add_f32 {vr(A0,2)}, {vr(A0,2)}, {vr(A1,2)}
              v_add_f32 v{dst}, v{A0}, v{A0+1}
              s_nop 1
              v_add_f32_dpp v{dst}, v{dst}, v{dst} quad_perm:[1,0,3,2] row_mask:0xf bank_mask:0xf
              s_nop 1
              v_add_f32_dpp v{dst}, v{dst}, v{dst} quad_perm:[2,3,0,1] row_mask:0xf bank_mask:0xf
              s_nop 1
              v_add_f32_dpp v{dst}, v{dst}, v{dst} row_half_mirror row_mask:0xf bank_mask:0xf""")

    Q0_, Q1_ = XR, XR + 2
    a(f"v_pk_add_f32 {vr(A0,2)}, {vr(XF,2)}, {vr(XF+2,2)}\nv_pk_add_f32 {vr(A1,2)}, {vr(XF+4,2)}, {vr(XF+6,2)}")
    a(f"v_pk_mul_f32 {vr(Q0_,2)}, {vr(XF,2)}, {vr(XF,2)}\nv_pk_mul_f32 {vr(Q1_,2)}, {vr(XF+2,2)}, {vr(XF+2,2)}")
    for i in range(2, 36):
        if i >= 4:
            d = A0 if i % 2 == 0 else A1
            a(f"v_pk_add_f32 {vr(d,2)}, {vr(d,2)}, {vr(XF+2*i,2)}")
        d = Q0_ if i % 2 == 0 else Q1_
        a(f"v_pk_fma_f32 {vr(d,2)}, {vr(XF+2*i,2)}, {vr(XF+2*i,2)}, {vr(d,2)}")
    MEAN, VAR = VT + 4, VT + 6
    rowsum(MEAN)
    a(f"v_mov_b32 v{A0}, v{Q0_}\nv_mov_b32 v{A0+1}, v{Q0_+1}\nv_mov_b32 v{A1}, v{Q1_}\nv_mov_b32 v{A1+1}, v{Q1_+1}")
    rowsum(VAR)
    a(f"""v_mul_f32 v{MEAN}, {f32(1.0/576)}, v{MEAN}
          v_mul_f32 v{VAR}, {f32(1.0/576)}, v{VAR}
          v_fma_f32 v{VAR}, -v{MEAN}, v{MEAN}, v{VAR}
          v_max_f32 v{VAR}, 0, v{VAR}
          v_cvt_pk_bf16_f32 v{MEAN}, v{MEAN}, v{MEAN}
          v_lshlrev_b32 v{MEAN}, 16, v{MEAN}
          v_cvt_pk_bf16_f32 v{VAR}, v{VAR}, v{VAR}
          v_lshlrev_b32 v{VAR}, 16, v{VAR}
          v_add_f32 v{VAR}, {f32(1e-5)}, v{VAR}
          v_cvt_pk_bf16_f32 v{VAR}, v{VAR}, v{VAR}
          v_lshlrev_b32 v{VAR}, 16, v{VAR}
          v_sqrt_f32 v{VAR}, v{VAR}
          s_nop 0
          v_cvt_pk_bf16_f32 v{VAR}, v{VAR}, v{VAR}
          v_lshlrev_b32 v{VAR}, 16, v{VAR}
          v_rcp_f32 v{VAR}, v{VAR}
          v_sub_f32 v{MEAN}, 0, v{MEAN}
          v_mov_b32 v{VAR+1}, v{VAR}
          v_mov_b32 v{MEAN+1}, v{MEAN}""")
    for i in range(36):
        a(f"v_pk_add_f32 {vr(XF+2*i,2)}, {vr(XF+2*i,2)}, {vr(MEAN,2)}")
    if "nodround" not in ABL:
        for i in range(36):
            a(f"v_cvt_pk_bf16_f32 v{XR+i}, v{XF+2*i}, v{XF+2*i+1}")
        for i in range(36):
            a(f"v_lshlrev_b32 v{XF+2*i}, 16, v{XR+i}\nv_and_b32 v{XF+2*i+1}, 0xffff0000, v{XR+i}")
    for i in range(36):
        a(f"v_pk_mul_f32 {vr(XF+2*i,2)}, {vr(XF+2*i,2)}, {vr(VAR,2)}")
    a(f"""v_and_b32 v{A0}, 7, v{vLANE}
          v_lshrrev_b32 v{A0+1}, 3, v{vLANE}
          v_xor_b32 v{A0+1}, v{A0+1}, v{A0}
          v_lshlrev_b32 v{A0}, 9, v{A0}
          v_lshl_add_u32 v{A0}, v{A0+1}, 4, v{A0}
          s_lshl_b32 s{sT2}, s{sQ}, 7
          s_add_u32 s{sT2}, s{sT2}, s{sHB}
          v_add_u32 v{A0}, s{sT2}, v{A0}""")
    for i in range(9):
        for r in range(4):
            a(f"v_cvt_pk_bf16_f32 v{XR+4*i+r}, v{XF+8*i+2*r}, v{XF+8*i+2*r+1}")
        a(f"ds_write_b128 v{A0}, {vr(XR+4*i,4)} offset:{4096*i}")
    for m in range(4):
        a(f"""v_add_u32 v{VT+4+m}, {2*m}, v{vHALF}
              v_xor_b32 v{VT+4+m}, v{VT+4+m}, v{vN}
              v_lshlrev_b32 v{VT+4+m}, 4, v{VT+4+m}
              v_lshl_add_u32 v{VT+4+m}, v{vHALF}, 9, v{VT+4+m}
              v_add_u32 v{VT+4+m}, s{sHB}, v{VT+4+m}""")
    a.wait(vtag="b1")
    a(f"""v_lshlrev_b32 v{VT}, 16, v{AXB+2}
          v_and_b32 v{VT+1}, 0xffff0000, v{AXB+2}
          v_cmp_gt_u32 vcc, {288*8}, v{AXB+3}
          v_add_u32 v{AXB+3}, {BOFF}, v{AXB+3}
          s_and_saveexec_b64 {sr(sT2,2)}, vcc
          ds_write_b64 v{AXB+3}, {vr(VT,2)}
          s_mov_b64 exec, -1""")
    a(f"""v_lshl_add_u32 v{vB0}, v{vHALF}, 12, v{vINB}
          s_lshl_b32 s{sT1}, s{sQ}, 8
          v_add_u32 v{vB0}, s{sT1}, v{vB0}
          v_add_u32 v{vB1}, 0x10000, v{vB0}
          s_cmp_eq_u32 s{sW}, 1
          s_cselect_b64 vcc, -1, 0
          s_waitcnt lgkmcnt(0)""")
    srd(a, SDBG, P_DBG, 256)
    top(a, -1)
    for s in range(2):
        a.lds(f"ds_read_b128 {vr(VB+4*s,4)}, v{VT+4+s%4} offset:{1024*s}", "x")
    for s in range(2):
        a(qkv_reads(s, False))
        a(qkv_reads(s, True))
    for s in range(2, 36):
        a.lds(f"ds_read_b128 {vr(VB+4*s,4)}, v{VT+4+s%4} offset:{1024*s}", "x")
    a.wait_lds_all()
    stamp(a, 2)
    rstamp(a, 8)
    a(f"s_cmp_eq_u32 s{sQ}, 0\ns_cbranch_scc0 L_qkv_sw")
    st0 = a.snap()
    qkv_body(a, False)
    a("s_branch L_qkv_done\nL_qkv_sw:")
    a.restore(st0)
    qkv_body(a, True)
    a("L_qkv_done:")
    assert not a.lq
    stamp(a, 3)
    rstamp(a, 7)
    a(f"""v_lshl_add_u32 v{vB0}, v{vHALF}, 10, v{vINB}
          s_lshr_b32 s{sT2}, s{sQ}, 1
          s_lshl_b32 s{sT1}, s{sT2}, 8
          v_add_u32 v{vB0}, s{sT1}, v{vB0}
          v_add_u32 v{vB1}, 0x10000, v{vB0}
          s_lshl_b32 s{sT1}, s{sT2}, 7
          s_add_u32 s{sT1}, s{sT1}, {BOFF}
          v_lshl_add_u32 v{vBA}, v{vHALF}, 4, s{sT1}
          s_lshl_b32 s{sT1}, s{sT2}, 11
          s_add_u32 s{sT1}, s{sT1}, s{sHB}
          v_add_u32 v{vHW}, s{sT1}, v{vL16}
          s_cmp_lg_u32 s{sSB}, 0
          s_cbranch_scc1 L_f1_B""")
    st0 = a.snap()
    ffn1(a, 0)
    a("s_branch L_f1_done\nL_f1_B:")
    a.restore(st0)
    ffn1(a, 1)
    a("L_f1_done:")
    stamp(a, 5)
    rstamp(a, 6)
    attention(a)
    stamp(a, 7)
    a(f"""s_barrier
          v_add_u32 v{vHW}, s{sHB}, v{vL16}""")
    for s in range(36):
        a(f"ds_read_b128 {vr(VB+4*s,4)}, v{vHW} offset:{1024*s}")
    a(f"""v_bfe_u32 v{vBA}, v{vLANE}, 2, 3
          v_lshrrev_b32 v{vC2}, 1, v{vBA}
          v_mul_u32_u24 v{vC2}, 18, v{vC2}
          v_and_b32 v{vBA}, 1, v{vBA}
          v_add3_u32 v{vC2}, v{vC2}, v{vBA}, 16
          v_mul_u32_u24 v{vC2}, 1152, v{vC2}
          v_lshl_add_u32 v{vC2}, v{vHALF}, 6, v{vC2}
          v_and_b32 v{vBA}, 3, v{vLANE}
          v_lshl_add_u32 v{vC2}, v{vBA}, 4, v{vC2}
          s_mul_i32 s{sT1}, s{sG}, 5120
          s_add_u32 s{sT1}, s{sT1}, {OF}
          v_add_u32 v{vHW}, s{sT1}, v{vL16}
          s_lshl_b32 s{sT2}, s{sQ}, 10
          v_add_u32 v{vBA}, s{sT2}, v{vHW}
          s_lshl_b32 s{sT2}, s{sQ}, 2
          v_add_u32 v{vXA}, s{sT2}, v{vHW}
          v_lshl_add_u32 v{vB0}, v{vHALF}, 9, v{vINB}
          s_lshr_b32 s{sT2}, s{sQ}, 1
          s_lshl_b32 s{sT2}, s{sT2}, 8
          v_add_u32 v{vB0}, s{sT2}, v{vB0}
          v_add_u32 v{vB1}, 0x10000, v{vB0}
          s_waitcnt lgkmcnt(0)
          s_barrier
          ds_write_b128 v{vBA}, {vr(VT,4)}
          ds_write_b32 v{vXA}, v{VT+4} offset:4096
          s_mul_i32 s{sT1}, s{sJ}, {72*1152}
          s_lshl_b32 s{sT2}, s{sW}, 7
          s_add_u32 s{sT2}, s{sT2}, s{sT1}
          s_lshl_b32 s{sT3}, s{sW}, 10
          s_add_u32 m0, s{sT3}, {XB}
          s_add_u32 s{sT1}, s{sT1}, 1024""")
    a.vm(f"buffer_load_dwordx4 v{vC2}, {sr(SWO,4)}, s{sT2} offen lds", "xb")
    a(f"s_mov_b32 m0, {XB + 8192}")
    w0_only(a, f"buffer_load_dwordx4 v{vC2}, {sr(SWO,4)}, s{sT1} offen lds")
    for k in range(K_F2 + PD1, K_F2 + PD2):
        a(dma_sym(k))
    a(f"""s_lshr_b32 s{sT2}, s{sQ}, 1
          s_lshl_b32 s{sT2}, s{sT2}, 9
          s_add_u32 s{sT2}, s{sT2}, {XB}
          v_add_u32 v{vBA}, s{sT2}, v{vINB}
          s_waitcnt lgkmcnt(0)
          s_barrier""")
    for k in range(5):
        a.lds(f"ds_read_b128 {vr(VOB+4*k,4)}, v{vHW} offset:{1024*k}", "ob")
    a(f"""v_mov_b32 v{VF}, s{sNON}
          s_mul_i32 s{sKVF}, s{sT}, {9*256}
          s_add_u32 s{sKVF}, s{sKVF}, {WS_FLAG}
          s_lshr_b32 s{sT2}, s{sJ}, 1
          s_lshl_b32 s{sT2}, s{sT2}, 6
          s_add_u32 s{sSTG}, s{sKVF}, s{sT2}
          s_lshr_b32 s{sT2}, s{sQ}, 1
          s_lshl_b32 s{sT2}, s{sT2}, 1
          s_add_u32 s{sT2}, s{sT2}, s{sG}
          s_lshl_b32 s{sT2}, s{sT2}, 6
          s_lshl_b32 s{sT3}, s{sJ}, 3
          s_add_u32 s{sT2}, s{sT2}, s{sT3}
          v_mov_b32 v{VF+2}, s{sT2}
          v_and_b32 v{VF+3}, 7, v{vLANE}
          v_lshlrev_b32 v{VF+3}, 3, v{VF+3}""")
    a.wait_lds_all()
    stamp(a, 8)
    a(f"s_cmp_lg_u32 s{sSB}, 0\ns_cbranch_scc1 L_f2_B")
    st0 = a.snap()
    ffn2(a, 0)
    a("s_branch L_f2_done\nL_f2_B:")
    a.restore(st0)
    ffn2(a, 1)
    a("L_f2_done:")
    if STAMPS:
        a("s_waitcnt vmcnt(0)")
    stamp(a, 10)
    stamp_flush(a)
    a("L_main_end:\ns_endpgm\nL_code_end:")


def ablate(L):
    out = []
    for ln in L:
        if "nokst" in ABL and ln.startswith("buffer_store_dwordx2") and "sc1" in ln:
            ln = ln.replace(" offen sc1", " offen offset:0").replace("s81 offen", "s93 offen") if False else "s_nop 0"
        out.append(ln)
    return out


def build():
    out = ["; Fused LayerNorm + (sliding-window attention || GELU FFN) + residual; generated by gen/gen6.py",
           f"; @launch grid=(256,1,1) block=(512,1,1) lds={LDS_BYTES}",
           '.amdgcn_target "amdgcn-amd-amdhsa--gfx950"\n.text']
    a = Asm()
    a(f".globl {NAME}_kernel\n.p2align 8\n.type {NAME}_kernel,@function\n{NAME}_kernel:")
    main_kernel(a)
    out += ablate(a.L)
    out.append(f""".section .rodata,"a"
.p2align 6
.amdhsa_kernel {NAME}_kernel
  .amdhsa_next_free_vgpr 256
  .amdhsa_next_free_sgpr 102
  .amdhsa_accum_offset 256
  .amdhsa_group_segment_fixed_size 0
  .amdhsa_kernarg_size 88
  .amdhsa_user_sgpr_count 2
  .amdhsa_user_sgpr_kernarg_segment_ptr 1
  .amdhsa_system_sgpr_workgroup_id_x 1
.end_amdhsa_kernel""")
    return "\n".join(out) + "\n"


if __name__ == "__main__":
    STAMPS = "--stamps" in sys.argv
    ABL = set(x[6:] for x in sys.argv if x.startswith("--abl="))
    args = [x for x in sys.argv[1:] if not x.startswith("--")]
    path = args[0] if args else f"cdna_kernels/{NAME}.s"
    open(path, "w").write(build())
    print("wrote", path)
```
